```python
import torch

def _softmax(x, axis=-1):
    return torch.softmax(x, dim=axis)
def _gelu(x):
    return torch.nn.functional.gelu(x, approximate="tanh")
def _silu(x):
    return torch.nn.functional.silu(x)
def _sigmoid(x):
    return torch.sigmoid(x)
def _layernorm(x, axis=-1, eps=1e-5):
    m = x.mean(dim=axis, keepdim=True)
    v = x.var(dim=axis, keepdim=True, unbiased=False)
    return (x - m) / torch.sqrt(v + eps)
def _scatter_add(tgt, idx, src, axis=0):
    return tgt.clone().index_add_(axis, idx, src)
def _segment_sum(src, seg, n):
    out = torch.zeros((n,) + src.shape[1:], dtype=src.dtype)
    return out.index_add_(0, seg, src)
def _pad(x, pw):
    flat = tuple(v for pair in reversed(pw) for v in pair)
    return torch.nn.functional.pad(x, flat)

kernel_name = 'concat_heads__softmax_full_mha__sliding_local_dilated__prompt'

def setup_inputs():

    _w = (lambda a: (lambda t: t.to(torch.bfloat16) if t.is_floating_point() else t)(torch.as_tensor(a)))
    def _A_setup():
        B, S, D = 1, 2048, 512
        return {
            "x": _w((lambda *s: torch.randn(*s, dtype=torch.bfloat16) * 0.2)(B, S, D)),
            "wqkv": _w((lambda *s: torch.randn(*s, dtype=torch.bfloat16) * 0.4)(D, 3 * D)),
            "wo": _w((lambda *s: torch.randn(*s, dtype=torch.bfloat16) * 0.1)(D, D)),
        }
    _A_in = _A_setup()

    def _B_setup():
        B, S, D = 1, 2048, 512
        return {
            "x": _w((lambda *s: torch.randn(*s, dtype=torch.bfloat16) * 0.4)(B, S, D)),
            "wqkv": _w((lambda *s: torch.randn(*s, dtype=torch.bfloat16) * 0.4)(D, 3 * D)),
            "wo": _w((lambda *s: torch.randn(*s, dtype=torch.bfloat16) * 0.05)(D, D)),
        }
    _B_in = _B_setup()

    return {
        "A_x": _A_in["x"],
        "A_wqkv": _A_in["wqkv"],
        "A_wo": _A_in["wo"],
        "B_x": _B_in["x"],
        "B_wqkv": _B_in["wqkv"],
        "B_wo": _B_in["wo"],
    }

def reference(A_x, A_wqkv, A_wo, B_x, B_wqkv, B_wo):
    def _A_ref(x, wqkv, wo):
        B, S, D = x.shape
        H = 32; Dh = D // H
        qkv = (lambda x, *d: x.permute(*d))((x @ wqkv).reshape(B, S, 3, H, Dh), 2, 0, 3, 1, 4)
        q, k, v = qkv[0], qkv[1], qkv[2]
        scale = Dh ** -0.5
        scores = torch.einsum("bhqd,bhkd->bhqk", q, k) * scale
        p = _softmax(scores, axis=-1)
        o = torch.einsum("bhqk,bhkd->bhqd", p, v)
        return (lambda x, *d: x.permute(*d))(o, 0, 2, 1, 3).reshape(B, S, D) @ wo

    def _B_ref(x, wqkv, wo):
        B, S, D = x.shape
        H = 32; Dh = D // H
        W, dil = 8, 2
        qkv = (lambda x, *d: x.permute(*d))((x @ wqkv).reshape(B, S, 3, H, Dh), 2, 0, 3, 1, 4)
        q, k, v = qkv[0], qkv[1], qkv[2]
        scale = Dh ** -0.5
        pos = torch.arange(S)
        off = torch.arange(W) * dil
        idx = pos[:, None] - off[None, :]
        mask = idx >= 0
        idx_c = torch.where(mask, idx, 0).reshape(-1)
        kg = k[:, :, idx_c, :].reshape(B, H, S, W, Dh)
        vg = v[:, :, idx_c, :].reshape(B, H, S, W, Dh)
        logits = torch.einsum("bhsd,bhswd->bhsw", q, kg) * scale
        logits = torch.where(mask[None, None, :, :], logits, -1e9)
        attn = _softmax(logits, axis=-1)
        o = torch.einsum("bhsw,bhswd->bhsd", attn, vg)
        return (lambda x, *d: x.permute(*d))(o, 0, 2, 1, 3).reshape(B, S, D) @ wo

    a = _A_ref(A_x, A_wqkv, A_wo)
    b = _B_ref(B_x, B_wqkv, B_wo)
    return torch.concatenate([a, b], axis=-1)
```

```python
import re

class Asm:
    def __init__(self):
        self.lines = []
        self.uid = 0
    def __call__(self, s):
        for l in s.split("\n"):
            l = l.strip()
            if l: self.lines.append(l)
    def label(self, name): self.lines.append(name + ":")
    def newlabel(self, p="L"):
        self.uid += 1
        return f"{p}_{self.uid}"
    def comment(self, s): self.lines.append("; " + s)

def vr(b, n=1):
    return f"v{b}" if n == 1 else f"v[{b}:{b+n-1}]"
def sr(b, n=1):
    return f"s{b}" if n == 1 else f"s[{b}:{b+n-1}]"

_reg = re.compile(r"^(-|abs\(|-abs\(|\|)?([vsa])(\d+|\[(\d+):(\d+)\])\)?\|?$")
def regs_of(op):
    op = op.strip()
    if op in ("vcc",): return {("s", "vcc")}
    if op in ("vcc_lo", "vcc_hi"): return {("s", "vcc")}
    if op in ("exec", "exec_lo", "exec_hi"): return {("s", "exec")}
    if op == "m0": return {("s", "m0")}
    m = _reg.match(op)
    if not m: return set()
    k = m.group(2)
    if m.group(4) is not None:
        return {(k, i) for i in range(int(m.group(4)), int(m.group(5)) + 1)}
    return {(k, int(m.group(3)))}

TRANS = ("v_exp_f32", "v_log_f32", "v_rcp_f32", "v_rsq_f32", "v_sqrt_f32", "v_sin_f32", "v_cos_f32", "v_rcp_iflag_f32")
def passes(op):
    if "32x32" in op: return 8
    if "16x16" in op: return 4
    raise ValueError(op)

class Ins:
    def __init__(self, text):
        self.text = text
        t = text.split(";")[0].strip()
        parts = t.split(None, 1)
        self.op = parts[0]
        op = self.op
        for suf in ("_e32", "_e64"):
            if op.endswith(suf): op = op[:-4]
        self.base = op
        rest = parts[1] if len(parts) > 1 else ""
        ops = [o.strip() for o in re.split(r",(?![^\[]*\])", rest)] if rest else []
        self.mods = ""
        if ops:
            last = ops[-1].split()
            if last:
                ops[-1] = last[0]; self.mods = " ".join(last[1:])
        self.ops = ops
        self.kind = "other"; self.w = set(); self.r = set()
        self.A = self.B = self.C = set()
        R = [regs_of(o) for o in ops]
        if op.startswith("v_mfma") or op.startswith("v_smfmac"):
            self.kind = "mfma"; self.p = passes(op)
            self.w = R[0]; self.A = R[1]; self.B = R[2]
            if op.startswith("v_smfmac"):
                self.C = R[0]; self.B = R[2] | R[3]
            else: self.C = R[3]
            self.r = self.A | self.B | self.C
        elif op.startswith("v_"):
            self.kind = "valu"
            if op.startswith("v_cmp"):
                self.w = R[0]; self.r = set().union(*R[1:])
            elif op.startswith("v_permlane") and "swap" in op:
                self.w = R[0] | R[1]; self.r = R[0] | R[1]
            elif op in ("v_add_co_u32", "v_sub_co_u32", "v_addc_co_u32", "v_subb_co_u32"):
                self.w = R[0] | R[1]; self.r = set().union(*R[2:])
            elif op == "v_nop": pass
            else:
                self.w = R[0]; self.r = set().union(*R[1:]) if len(R) > 1 else set()
                if op.startswith("v_fmac") or op.startswith("v_dot2c") or op == "v_writelane_b32": self.r |= R[0]
                if op == "v_cndmask_b32" and len(ops) == 3: self.r |= {("s", "vcc")}
        elif op.startswith("ds_"):
            self.kind = "ds"
            if op.startswith("ds_read") or op.startswith("ds_bpermute") or op.startswith("ds_swizzle") or "_rtn" in op:
                self.w = R[0]; self.r = set().union(*R[1:])
            else: self.r = set().union(*R)
        elif op.startswith("buffer_") or op.startswith("global_"):
            self.kind = "vmem"
            islds = (" lds" in (" " + self.mods)) or "load_lds" in op
            self.lds = islds
            if op in ("buffer_wbl2", "buffer_inv"): pass
            elif "load" in op and not islds:
                self.w = R[0]; self.r = set().union(*R[1:])
            elif islds:
                self.r = set().union(*R) | {("s", "m0")}
            elif "atomic" in op:
                self.r = set().union(*R)
                if "sc0" in self.mods: self.w = R[0]
            else:
                self.r = set().union(*R)
            self.wide = None
            if "store" in op and (op.endswith("x4") or op.endswith("x3")):
                self.wide = R[0] if op.startswith("buffer") else R[1]
        elif op.startswith("s_"):
            self.kind = "salu"
            if op.startswith("s_cmp") or op.startswith("s_cbranch") or op in ("s_branch", "s_barrier", "s_waitcnt", "s_nop", "s_endpgm", "s_sleep", "s_setprio", "s_bitcmp1_b32", "s_bitcmp0_b32"):
                self.r = set().union(*R) if R else set()
            else:
                self.w = R[0] if R else set(); self.r = set().union(*R[1:]) if len(R) > 1 else set()
                if "saveexec" in op: self.w = self.w | {("s", "exec")}
    def states(self):
        if self.op == "s_nop": return int(self.ops[0], 0) + 1
        return 1

def V(s): return {x for x in s if x[0] in "va"}
def S(s): return {x for x in s if x[0] == "s"}

def need(p, c):
    n = 0
    if p.kind == "valu":
        pw = V(p.w); ps = S(p.w)
        if c.kind == "mfma" and pw & c.r: n = max(n, 2)
        if p.base in TRANS and c.kind == "valu" and c.base not in TRANS and pw & c.r: n = max(n, 1)
        if p.base in TRANS and c.kind in ("vmem", "ds") and pw & c.r: n = max(n, 1)
        if c.kind == "valu" and c.base.startswith("v_permlane") and pw & c.r: n = max(n, 2)
        if c.kind == "valu" and c.base in ("v_readlane_b32", "v_readfirstlane_b32") and pw & c.r: n = max(n, 1)
        if c.kind == "valu" and ("dpp" in c.op or "row_" in c.mods or "quad_perm" in c.mods) and pw & c.r: n = max(n, 2)
        if ps:
            if c.kind == "valu" and ps & c.r:
                n = max(n, 4 if c.base in ("v_readlane_b32", "v_writelane_b32") else 2)
            if c.kind == "vmem" and ps & c.r: n = max(n, 5)
            if c.kind == "salu" and ps & c.r: n = max(n, 1)
        if ("sdwa" in p.op or "op_sel" in p.mods) and not p.base.startswith("v_pk") and c.kind in ("valu",) and pw & (c.r | c.w): n = max(n, 1)
    if p.kind == "mfma":
        big = 12 if p.p == 8 else 8
        if c.kind == "valu" and p.w & (c.r | c.w): n = max(n, big)
        if c.kind in ("vmem", "ds") and p.w & (c.r | c.w): n = max(n, big)
        if c.kind == "mfma":
            if p.w & (c.A | c.B): n = max(n, big)
            if p.w & c.C:
                if not (p.w == c.C and p.p == c.p): n = max(n, big - 2)
                elif p.base != c.base: n = max(n, big - 2)
            elif p.w & c.w and p.p != c.p: n = max(n, big - 2)
        if c.kind == "valu" and p.C & c.w: n = max(n, 7 if p.p == 8 else 3)
    if p.kind == "vmem" and getattr(p, "wide", None):
        if c.kind in ("valu", "mfma") and p.wide & c.w: n = max(n, 2)
        elif p.wide & c.w: n = max(n, 1)
    if p.kind == "salu" and ("s", "m0") in p.w and c.kind == "vmem" and getattr(c, "lds", False): n = max(n, 1)
    return n

def is_ins(l):
    l = l.strip()
    return l and not l.startswith(";") and not l.startswith(".") and not l.endswith(":")

def fix_hazards(lines, verbose=False):
    WIN = 14
    changed = True; total = 0
    out = list(lines)
    while changed:
        changed = False
        idx = [i for i, l in enumerate(out) if is_ins(l)]
        ins = {i: Ins(out[i]) for i in idx}
        labels = {l.strip()[:-1]: i for i, l in enumerate(out) if l.strip().endswith(":") and not l.strip().startswith(";")}
        pos = {i: k for k, i in enumerate(idx)}
        preds = {i: [] for i in idx}
        for k, i in enumerate(idx):
            I = ins[i]
            if k + 1 < len(idx) and I.op not in ("s_branch", "s_endpgm"):
                preds[idx[k + 1]].append(i)
            if I.op == "s_branch" or I.op.startswith("s_cbranch"):
                t = labels[I.ops[0]]
                nxt = next(j for j in idx if j > t)
                preds[nxt].append(i)
        for i in idx:
            c = ins[i]
            if c.op == "s_nop": continue
            worst = 0
            stack = [(p, 0) for p in preds[i]]
            seen = {}
            while stack:
                j, d = stack.pop()
                if d >= WIN or seen.get(j, 99) <= d: continue
                seen[j] = d
                n = need(ins[j], c)
                if n - d > worst: worst = n - d; who = j
                for p in preds[j]: stack.append((p, d + ins[j].states()))
            if worst > 0:
                if verbose: print(f"pad {worst}: [{out[who]}] -> [{out[i]}]")
                out.insert(i, f"s_nop {worst-1}")
                total += worst; changed = True
                break
    return out
```

```python
import sys, struct
from asmlib import *

NAME = "concat_heads__softmax_full_mha__sliding_local_dilated__prompt"
MB = 1 << 20
QF, KF, VF, OA, OB, FL = 0, 2*MB, 4*MB, 6*MB, 8*MB, 10*MB
WS_BYTES = 11*MB
def f2u(x): return struct.unpack("<I", struct.pack("<f", x))[0]
LOG2E = 1.4426950408889634
CSC = f2u(0.25*LOG2E)
SLOT = 34816; XREG = 10240
sX, sW, sWS, sOUT = 24, 28, 32, 36
sWAVE = 40
sTB, sHG, sROT = 41, 42, 43
sH, sB = 44, 45
sTO, sCO = 46, 47
sC = 48
T0 = 50

def srd(a, d, p, nbytes):
    a(f"s_mov_b32 s{d}, s{p}\ns_mov_b32 s{d+1}, s{p+1}\ns_mov_b32 s{d+2}, {nbytes}\ns_mov_b32 s{d+3}, 0x20000")

def entry(a, end_label):
    a(f"""s_cmp_ge_u32 s2, 256
          s_cbranch_scc1 {end_label}
          s_load_dwordx16 s[4:19], s[0:1], 0
          s_load_dwordx2 s[20:21], s[0:1], 64
          v_lshrrev_b32 v1, 6, v0
          v_and_b32 v0, 63, v0
          v_readfirstlane_b32 s{sWAVE}, v1
          s_and_b32 s50, s2, 7
          s_lshr_b32 s51, s2, 3
          s_lshr_b32 s52, s51, 2
          s_and_b32 s53, s51, 3
          s_lshr_b32 s54, s50, 1
          s_lshl_b32 s54, s54, 3
          s_add_u32 s{sTB}, s54, s52
          s_and_b32 s54, s50, 1
          s_lshl_b32 s54, s54, 2
          s_add_u32 s{sHG}, s54, s53
          s_lshl_b32 s54, s53, 1
          s_add_u32 s{sROT}, s54, s52
          s_and_b32 s{sROT}, s{sROT}, 7
          s_lshl_b32 s54, s50, 2
          s_add_u32 s{sH}, s54, s53
          s_mov_b32 s{sB}, s52
          s_lshr_b32 s55, s51, 3
          s_add_u32 s{sTO}, s54, s55
          s_and_b32 s{sCO}, s51, 7
          s_mov_b32 s{sC}, {CSC:#x}
          s_waitcnt lgkmcnt(0)""")
    srd(a, sWS, 20, WS_BYTES)

ACC = 32
aQ = lambda i: ACC + 4*i
aK = lambda i: ACC + 16 + 4*(i+1)
aV = lambda i: ACC + 36 + 4*(i+1)
F0, F1 = 88, 120
fX = lambda F, i: F + 4*(i+1)
fW = lambda F, seg: F + 20 + 4*seg

def loader(a):
    srd(a, sX, 4, 2*MB)
    srd(a, sW, 6, 512*3072)
    a(f"""s_sub_u32 s50, s{sWAVE}, 4
          v_lshrrev_b32 v1, 3, v0
          v_and_b32 v2, 7, v0
          s_and_b32 s51, s50, 1
          s_lshl_b32 s52, s51, 2
          v_lshrrev_b32 v3, 1, v1
          v_add_u32 v4, s52, v3
          v_xor_b32 v4, v4, v2
          v_lshlrev_b32 v4, 4, v4
          v_lshl_add_u32 v4, v1, 10, v4
          s_lshl_b32 s53, s{sTB}, 16
          s_lshl_b32 s54, s50, 13
          s_add_u32 s54, s53, s54
          v_add_u32 v8, s54, v4
          s_lshl_b32 s52, s50, 1
          v_add_u32 v4, s52, v3
          v_xor_b32 v4, v4, v2
          v_and_b32 v4, 7, v4
          v_lshlrev_b32 v4, 4, v4
          v_lshl_add_u32 v4, v1, 10, v4
          s_max_u32 s53, s53, 16384
          s_sub_u32 s53, s53, 16384
          s_lshl_b32 s54, s50, 12
          s_add_u32 s54, s53, s54
          v_add_u32 v9, s54, v4
          ; W rows
          v_and_b32 v4, 1, v3
          s_lshl_b32 s52, s51, 1
          v_add_u32 v4, s52, v4
          v_lshlrev_b32 v4, 1, v4
          v_xor_b32 v4, v4, v2
          v_lshlrev_b32 v4, 4, v4
          v_mul_u32_u24 v5, 3072, v1
          v_add_u32 v4, v4, v5
          s_mul_i32 s53, s50, 24576
          s_lshl_b32 s54, s{sHG}, 7
          s_add_u32 s54, s53, s54
          v_add_u32 v10, s54, v4
          s_lshl_b32 s56, s50, 10
          s_add_u32 s56, s56, 2048
          s_lshl_b32 s57, s50, 9
          s_mul_i32 s58, s50, 3072
          s_add_u32 s58, s58, {XREG}
          s_mov_b32 s59, 0
          s_mov_b32 s60, 0
          s_mov_b32 s61, s{sROT}""")
    a.label("L_ld_loop")
    a(f"""s_cmp_lt_u32 s59, 3
          s_cbranch_scc1 L_ld_nowait
          s_waitcnt vmcnt(16)
          s_barrier""")
    a.label("L_ld_nowait")
    a(f"""s_lshl_b32 s62, s61, 7
          s_mul_i32 s63, s61, {64*3072}
          s_add_u32 m0, s60, s56
          s_add_u32 s64, s62, 32768
          buffer_load_dwordx4 v8, s[{sX}:{sX+3}], s62 offen lds
          s_add_u32 m0, m0, 4096
          s_add_u32 s65, s63, {32*3072}
          buffer_load_dwordx4 v8, s[{sX}:{sX+3}], s64 offen lds
          s_add_u32 m0, s60, s58
          s_cmp_lt_u32 s59, 8
          buffer_load_dwordx4 v10, s[{sW}:{sW+3}], s63 offen lds
          buffer_load_dwordx4 v10, s[{sW}:{sW+3}], s63 offen offset:1024 lds
          buffer_load_dwordx4 v10, s[{sW}:{sW+3}], s63 offen offset:2048 lds
          s_cbranch_scc1 L_ld_nohalo
          s_add_u32 m0, s60, s57
          s_mov_b32 exec_hi, 0
          buffer_load_dwordx4 v9, s[{sX}:{sX+3}], s62 offen lds
          s_mov_b32 exec_hi, -1""")
    a.label("L_ld_nohalo")
    a(f"""s_add_u32 s66, s60, s58
          s_add_u32 m0, s66, 12288
          s_add_u32 s61, s61, 1
          buffer_load_dwordx4 v10, s[{sW}:{sW+3}], s65 offen lds
          buffer_load_dwordx4 v10, s[{sW}:{sW+3}], s65 offen offset:1024 lds
          buffer_load_dwordx4 v10, s[{sW}:{sW+3}], s65 offen offset:2048 lds
          s_and_b32 s61, s61, 7
          s_add_u32 s60, s60, {SLOT}
          s_cmp_eq_u32 s60, {4*SLOT}
          s_cselect_b32 s60, 0, s60
          s_add_u32 s59, s59, 1
          s_cmp_eq_u32 s59, 8
          s_cbranch_scc0 L_ld_noswitch
          s_mov_b32 s{sX}, s10
          s_mov_b32 s{sX+1}, s11
          s_mov_b32 s{sW}, s12
          s_mov_b32 s{sW+1}, s13""")
    a.label("L_ld_noswitch")
    a(f"""s_cmp_lt_u32 s59, 16
          s_cbranch_scc1 L_ld_loop
          s_waitcnt vmcnt(18)
          s_barrier
          s_waitcnt vmcnt(9)
          s_barrier
          s_waitcnt vmcnt(0)
          s_barrier""")

def gemm_mfmas(F, halo):
    L = []
    for i in range(-1 if halo else 0, 4):
        if i >= 0: L.append(f"v_mfma_f32_16x16x32_bf16 {vr(aQ(i),4)}, {vr(fW(F,0),4)}, {vr(fX(F,i),4)}, {vr(aQ(i),4)}")
        L.append(f"v_mfma_f32_16x16x32_bf16 {vr(aK(i),4)}, {vr(fW(F,1),4)}, {vr(fX(F,i),4)}, {vr(aK(i),4)}")
        L.append(f"v_mfma_f32_16x16x32_bf16 {vr(aV(i),4)}, {vr(fX(F,i),4)}, {vr(fW(F,2),4)}, {vr(aV(i),4)}")
    return L
def gemm_reads(F, s, halo):
    L = []
    for seg in range(3):
        for jj in range(2):
            L.append(f"ds_read_b64_tr_b16 {vr(fW(F,seg)+2*jj,2)}, v13 offset:{XREG + s*12288 + seg*1024 + jj*512}")
    for i in range(-1 if halo else 0, 4):
        L.append(f"ds_read_b128 {vr(fX(F,i),4)}, v{11+s} offset:{(i+1)*2048}")
    return L
def interleave(a, M, R, per=2):
    R = list(R)
    for m in M:
        a(m)
        for _ in range(per):
            if R: a(R.pop(0))
    for r in R: a(r)

def gemm_loop(a, halo, tag):
    for r in range(ACC, ACC+56): a(f"v_mov_b32 v{r}, 0")
    rng = range(F1, F1+32) if not halo else list(range(F1, F1+4)) + list(range(F1+20, F1+32))
    for r in rng: a(f"v_mov_b32 v{r}, 0")
    a("s_mov_b32 s59, 0")
    a.label(f"L_g_{tag}")
    a(f"""v_add_u32 v11, s60, v8
          v_add_u32 v12, s60, v9
          v_add_u32 v13, s60, v10
          s_add_u32 s60, s60, {SLOT}
          s_cmp_eq_u32 s60, {4*SLOT}
          s_cselect_b32 s60, 0, s60
          s_add_u32 s59, s59, 1
          s_barrier""")
    interleave(a, gemm_mfmas(F1, halo), gemm_reads(F0, 0, halo))
    a("s_waitcnt lgkmcnt(0)")
    interleave(a, gemm_mfmas(F0, halo), gemm_reads(F1, 1, halo))
    a(f"""s_cmp_lt_u32 s59, 8
          s_waitcnt lgkmcnt(0)
          s_cbranch_scc1 L_g_{tag}""")
    for m in gemm_mfmas(F1, halo): a(m)

def cvt2(a, d, s):
    a(f"v_cvt_pk_bf16_f32 v{d}, v{s}, v{s+1}\nv_cvt_pk_bf16_f32 v{d+1}, v{s+2}, v{s+3}")

def consumer(a, sc):
    a(f"""v_and_b32 v1, 15, v0
          v_lshrrev_b32 v2, 4, v0
          v_lshrrev_b32 v3, 1, v1
          v_xor_b32 v3, v3, v2
          v_lshlrev_b32 v3, 4, v3
          v_lshl_add_u32 v8, v1, 7, v3
          v_xor_b32 v9, 64, v8
          v_bfe_u32 v4, v0, 2, 2
          v_lshrrev_b32 v5, 1, v4
          v_and_b32 v6, 1, v2
          v_lshl_add_u32 v5, v6, 1, v5
          v_xor_b32 v5, s{sWAVE}, v5
          v_lshlrev_b32 v5, 5, v5
          v_lshl_add_u32 v5, v4, 7, v5
          v_and_b32 v6, 3, v0
          v_lshl_add_u32 v5, v6, 3, v5
          v_mul_u32_u24 v6, 3072, v2
          v_add_u32 v10, v5, v6
          v_lshlrev_b32 v14, 4, v0
          s_mov_b32 s60, 0""")
    gemm_loop(a, False, "A")
    a(f"""s_lshl_b32 s50, s{sHG}, 2
          s_add_u32 s50, s50, s{sWAVE}
          s_lshl_b32 s51, s50, 16
          s_lshl_b32 s52, s{sTB}, 11
          s_add_u32 s51, s51, s52
          s_add_u32 s52, s51, {KF}
          s_add_u32 s53, s51, {VF}""")
    P = F0
    for (acc, so, scale, base) in ((aK, 52, False, P), (aV, 53, False, P+8), (aQ, 51, True, P+16)):
        if scale:
            for r in range(aQ(0), aQ(0)+16): a(f"v_mul_f32 v{r}, s{sC}, v{r}")
        for i in range(4): cvt2(a, base+2*i, acc(i))
        for pr in range(2):
            b = base + 4*pr
            a(f"v_permlane16_swap_b32 v{b}, v{b+2}\nv_permlane16_swap_b32 v{b+1}, v{b+3}")
        for pr in range(2):
            a(f"buffer_store_dwordx4 {vr(base+4*pr,4)}, v14, s[{sWS}:{sWS+3}], s{so} offen offset:{pr*1024} {sc}")
    return

def local_attn(a, sc):
    pQ = lambda i: 88 + 2*i
    pK = lambda i: 96 + 2*(i+1)
    pV = lambda i: 106 + 2*(i+1)
    Sx = lambda i: 120 + 8*i
    for i in range(-1, 4): cvt2(a, pK(i), aK(i))
    for i in range(4): cvt2(a, pQ(i), aQ(i))
    for i in range(4):
        a(f"v_mfma_f32_16x16x16_bf16 {vr(Sx(i),4)}, {vr(pK(i-1),2)}, {vr(pQ(i),2)}, {vr(24 if i==0 else 20,4)}")
        a(f"v_mfma_f32_16x16x16_bf16 {vr(Sx(i)+4,4)}, {vr(pK(i),2)}, {vr(pQ(i),2)}, v[16:19]")
    for i in range(-1, 4): cvt2(a, pV(i), aV(i))
    M = lambda i: 32 + i
    Tm = lambda i: 36 + i
    for i in range(4):
        s = Sx(i)
        a(f"v_max3_f32 v{M(i)}, v{s}, v{s+1}, v{s+2}\nv_max3_f32 v{Tm(i)}, v{s+3}, v{s+4}, v{s+5}")
    for i in range(4):
        s = Sx(i)
        a(f"v_max3_f32 v{M(i)}, v{M(i)}, v{s+6}, v{s+7}")
    for i in range(4): a(f"v_max_f32 v{M(i)}, v{M(i)}, v{Tm(i)}")
    for sw in ("v_permlane32_swap_b32", "v_permlane16_swap_b32"):
        for i in range(4): a(f"v_mov_b32 v{Tm(i)}, v{M(i)}")
        for i in range(4): a(f"{sw} v{M(i)}, v{Tm(i)}")
        for i in range(4): a(f"v_max_f32 v{M(i)}, v{M(i)}, v{Tm(i)}")
    for i in range(4): a(f"v_mul_f32 v{M(i)}, s{sC}, v{M(i)}")
    pP = lambda i: 40 + 4*i
    oO = lambda i: 56 + 4*i
    oL = lambda i: 72 + 4*i
    for i in range(4):
        s = Sx(i)
        for r in range(8): a(f"v_fma_f32 v{s+r}, v{s+r}, s{sC}, -v{M(i)}")
        for r in range(8): a(f"v_exp_f32 v{s+r}, v{s+r}")
        cvt2(a, pP(i), s); cvt2(a, pP(i)+2, s+4)
        if i > 0:
            a(f"v_mfma_f32_16x16x32_bf16 {vr(oL(i-1),4)}, v[28:31], {vr(pP(i-1),4)}, 0")
            a(f"v_mfma_f32_16x16x32_bf16 {vr(oO(i-1),4)}, {vr(pV(i-2),4)}, {vr(pP(i-1),4)}, 0")
    a(f"v_mfma_f32_16x16x32_bf16 {vr(oL(3),4)}, v[28:31], {vr(pP(3),4)}, 0")
    a(f"v_mfma_f32_16x16x32_bf16 {vr(oO(3),4)}, {vr(pV(2),4)}, {vr(pP(3),4)}, 0")
    a(f"""s_lshl_b32 s50, s{sHG}, 2
          s_add_u32 s50, s50, s{sWAVE}
          s_lshl_b32 s50, s50, 10
          s_lshl_b32 s51, s{sTB}, 16
          s_add_u32 s50, s50, s51
          s_add_u32 s50, s50, {OB}
          s_add_u32 s51, s50, 32768""")
    for i in range(4):
        a(f"v_rcp_f32 v{oL(i)}, v{oL(i)}")
    for i in range(4):
        for r in range(4): a(f"v_mul_f32 v{oO(i)+r}, v{oL(i)}, v{oO(i)+r}")
        cvt2(a, 88+2*i, oO(i))
    for pr in range(2):
        b = 88 + 4*pr
        a(f"v_permlane16_swap_b32 v{b}, v{b+2}\nv_permlane16_swap_b32 v{b+1}, v{b+3}")
    for pr in range(2):
        a(f"buffer_store_dwordx4 {vr(88+4*pr,4)}, v14, s[{sWS}:{sWS+3}], s{50+pr} offen {sc}")

def local_masks(a):
    NEG = f2u(-1e30)
    a(f"""v_and_b32 v1, 15, v0
          v_lshrrev_b32 v2, 4, v0
          v_lshlrev_b32 v2, 2, v2
          v_sub_u32 v1, v1, v2
          v_mov_b32 v3, {NEG:#x}
          s_cmp_eq_u32 s{sTB}, 0
          s_cselect_b64 s[52:53], -1, 0""")
    for r in range(4):
        a(f"""v_subrev_u32 v4, {r}, v1
              v_and_b32 v5, -15, v4
              v_cmp_eq_u32 vcc, 0, v5
              v_add_u32 v4, 16, v4
              v_and_b32 v5, -15, v4
              v_cndmask_b32 v{16+r}, v3, 0, vcc
              v_cmp_eq_u32 vcc, 0, v5
              v_mov_b32 v{28+r}, 0x3f803f80
              v_cndmask_b32 v{20+r}, v3, 0, vcc
              v_cndmask_b32 v{24+r}, v{20+r}, v3, s[52:53]""")

def phase_qkv(a, sc):
    a(f"""s_cmp_ge_u32 s{sWAVE}, 4
          s_cbranch_scc1 L_loader""")
    local_masks(a)
    consumer(a, sc)
    gemm_loop(a, True, "B")
    local_attn(a, sc)
    a("s_branch L_qkv_done")
    a.label("L_loader")
    loader(a)
    a.label("L_qkv_done")

S0, S1, O0, O1, CC = 32, 48, 64, 80, 96
Qr = (112, 116); NM = (120, 122); AC = 124; ZZ = 126; IDX = 31
KR = lambda t: 160 + 4*t
VR = lambda t, blk: 192 + 8*t + 4*blk
L_ACC = 0
L_Q = 18432
L_M = L_Q + 8192
L_WO = 28672
ATT_LDS = L_WO + 131072

def v_const_init(a, regs):
    a(f"""v_and_b32 v1, 27, v0
          v_cmp_eq_u32 vcc, 16, v1
          v_mov_b32 v2, 0x3f803f80
          v_cndmask_b32 v2, 0, v2, vcc""")
    for r in regs: a(f"v_mov_b32 v{r}, v2")

def att_loads(a, sc):
    a(f"""s_add_u32 s50, s{sWAVE}, s{sB}
          s_and_b32 s50, s50, 7
          s_lshl_b32 s50, s50, 13
          s_lshl_b32 s51, s{sH}, 16
          s_add_u32 s50, s50, s51
          s_add_u32 s52, s50, {KF}
          s_add_u32 s53, s52, 4096
          s_add_u32 s54, s50, {VF}
          s_add_u32 s55, s54, 4096
          s_lshl_b32 s56, s{sB}, 3
          s_add_u32 s56, s56, s{sWAVE}
          s_lshl_b32 s56, s56, 10
          s_add_u32 s56, s56, s51
          v_lshlrev_b32 v14, 4, v0
          v_and_b32 v15, 0x2f0, v14
          s_mov_b32 s58, 0xffff
          s_mov_b32 s59, 0xffff
          buffer_load_dwordx4 {vr(Qr[0],4)}, v14, s[{sWS}:{sWS+3}], s56 offen {sc}""")
    for t in range(8):
        a(f"buffer_load_dwordx4 {vr(KR(t),4)}, v14, s[{sWS}:{sWS+3}], s{52+t//4} offen offset:{(t%4)*1024} {sc}")
        a("s_mov_b64 exec, s[58:59]")
        for blk in range(2):
            a(f"buffer_load_dwordx4 {vr(VR(t,blk),4)}, v15, s[{sWS}:{sWS+3}], s{54+t//4} offen offset:{(t%4)*1024+blk*256} {sc}")
        a("s_mov_b64 exec, -1")

def max16(a, S, d, t):
    a(f"""v_max3_f32 v{d}, v{S}, v{S+1}, v{S+2}
          v_max3_f32 v{t}, v{S+3}, v{S+4}, v{S+5}
          v_max3_f32 v{d}, v{d}, v{S+6}, v{S+7}
          v_max3_f32 v{t}, v{t}, v{S+8}, v{S+9}
          v_max3_f32 v{d}, v{d}, v{S+10}, v{S+11}
          v_max3_f32 v{t}, v{t}, v{S+12}, v{S+13}
          v_max3_f32 v{d}, v{d}, v{S+14}, v{S+15}
          v_max_f32 v{d}, v{d}, v{t}""")

def qk(S, t, q): return f"v_mfma_f32_32x32x16_bf16 {vr(S,16)}, {vr(KR(t),4)}, {vr(q,4)}, {vr(CC,16)}"
def pv(O, t, blk, S): return f"v_smfmac_f32_32x32x32_bf16 {vr(O,16)}, {vr(VR(t,blk),4)}, {vr(S+8*blk,8)}, v{IDX}"
def zero16(O): return f"v_mfma_f32_32x32x8_bf16 {vr(O,16)}, {vr(ZZ,2)}, {vr(ZZ,2)}, 0"
def cset(p): return f"v_mfma_f32_32x32x8_bf16 {vr(CC,16)}, {vr(AC,2)}, {vr(NM[p],2)}, 0"

def att_body(a, p):
    O, Op = (O0, O1) if p == 0 else (O1, O0)
    for t in range(8):
        Sa, Sb = (S0, S1) if t % 2 == 0 else (S1, S0)
        extra = {}
        def ex(i, s): extra.setdefault(i, []).append(s)
        ex(1, pv(Op, 7, 1, Sb) if t == 0 else pv(O, t-1, 1, Sb))
        ex(4, qk(Sb, t+1, Qr[p]) if t < 7 else qk(Sb, 0, Qr[1-p]))
        ex(10, pv(O, t, 0, Sa))
        if t == 1:
            for r in range(9): ex(r, f"ds_add_f32 v16, v{Op+r} offset:{L_ACC + r*256}")
        if t == 2:
            ex(0, f"ds_read_b128 {vr(Qr[1-p],4)}, v17 offset:{L_Q}")
            ex(1, f"ds_read_b32 v{NM[1-p]}, v18 offset:{L_M}")
            ex(4, "s_mul_i32 s62, s60, 2304")
            ex(5, "v_add_u32 v16, s62, v19")
            ex(9, "s_add_u32 s60, s60, 1")
            ex(9, "s_and_b32 s60, s60, 7")
            ex(10, "s_add_u32 s62, s60, 1")
            ex(10, "s_and_b32 s62, s62, 7")
            ex(11, "s_lshl_b32 s62, s62, 8")
            ex(13, "v_add_u32 v18, s62, v19")
            ex(14, "v_lshlrev_b32 v17, 2, v18")
        if t == 3:
            ex(13, zero16(Op))
        if t == 6:
            ex(6, "s_waitcnt lgkmcnt(0)")
            ex(7, cset(1-p))
        for i in range(16):
            a(f"v_exp_f32 v{Sa+i}, v{Sa+i}")
            for s in extra.get(i, []): a(s)

def att_fallback(a):
    a(f"""s_lshl_b32 s51, s{sH}, 16
          s_add_u32 s52, s51, {KF}
          s_add_u32 s54, s51, {VF}
          s_add_u32 s55, s52, 65536
          v_add_u32 v17, s62, v19
          v_lshlrev_b32 v17, 2, v17
          ds_read_b128 {vr(Qr[0],4)}, v17 offset:{L_Q}
          v_mov_b32 v20, 0xff800000
          s_mov_b32 s53, s52""")
    a.label("L_fb1")
    a(f"""buffer_load_dwordx4 {vr(KR(0),4)}, v14, s[{sWS}:{sWS+3}], s53 offen sc1
          s_add_u32 s53, s53, 1024
          s_waitcnt vmcnt(0) lgkmcnt(0)
          v_mfma_f32_32x32x16_bf16 {vr(S0,16)}, {vr(KR(0),4)}, {vr(Qr[0],4)}, 0""")
    max16(a, S0, 21, 22)
    a(f"""v_max_f32 v20, v20, v21
          s_cmp_lt_u32 s53, s55
          s_cbranch_scc1 L_fb1
          v_mov_b32 v21, v20
          v_permlane32_swap_b32 v20, v21
          v_max_f32 v20, v20, v21""")
    for r in range(16): a(f"v_sub_f32 v{CC+r}, 0, v20\nv_mov_b32 v{O0+r}, 0")
    a.label("L_fb2")
    a(f"""buffer_load_dwordx4 {vr(KR(0),4)}, v14, s[{sWS}:{sWS+3}], s52 offen sc1
          s_mov_b64 exec, s[58:59]
          buffer_load_dwordx4 {vr(VR(0,0),4)}, v15, s[{sWS}:{sWS+3}], s54 offen sc1
          buffer_load_dwordx4 {vr(VR(0,1),4)}, v15, s[{sWS}:{sWS+3}], s54 offen offset:256 sc1
          s_mov_b64 exec, -1
          s_add_u32 s52, s52, 1024
          s_add_u32 s54, s54, 1024
          s_waitcnt vmcnt(0)""")
    a(qk(S0, 0, Qr[0]))
    for i in range(16): a(f"v_exp_f32 v{S0+i}, v{S0+i}")
    a(pv(O0, 0, 0, S0)); a(pv(O0, 0, 1, S0))
    a(f"""s_cmp_lt_u32 s52, s55
          s_nop 7
          s_nop 7
          s_cbranch_scc1 L_fb2""")

def phase_att(a, sc):
    v_const_init(a, range(192, 256))
    att_loads(a, sc)
    a(f"""v_lshlrev_b32 v19, 2, v0
          v_mov_b32 v{IDX}, 0xdddd
          v_mov_b32 v{ZZ}, 0
          v_mov_b32 v{ZZ+1}, 0
          v_mov_b32 v{NM[0]+1}, 0
          v_mov_b32 v{NM[1]+1}, 0
          v_mov_b32 v{AC+1}, 0
          v_cmp_gt_u32 vcc, 32, v0
          v_mov_b32 v2, 0x3f80
          s_mul_i32 s62, s{sWAVE}, 2304
          v_cndmask_b32 v{AC}, 0, v2, vcc
          v_add_u32 v16, s62, v19""")
    for r in range(9): a(f"ds_write_b32 v16, v{ZZ} offset:{L_ACC + r*256}")
    a(zero16(O0)); a(zero16(O1)); a(zero16(S1))
    a(f"""s_lshl_b32 s62, s{sWAVE}, 8
          v_add_u32 v18, s62, v19
          v_lshlrev_b32 v17, 2, v18
          s_waitcnt vmcnt(23)
          v_mfma_f32_32x32x16_bf16 {vr(S0,16)}, {vr(KR(0),4)}, {vr(Qr[0],4)}, 0
          ds_write_b128 v17, {vr(Qr[0],4)} offset:{L_Q}""")
    max16(a, S0, 20, 21)
    a(f"""v_mov_b32 v21, v20
          v_permlane32_swap_b32 v20, v21
          v_max_f32 v20, v20, v21
          v_cvt_pk_bf16_f32 v{NM[0]}, -v20, 0
          ds_write_b32 v18, v{NM[0]} offset:{L_M}""")
    a(cset(0))
    a(f"""s_mov_b32 s60, s{sWAVE}
          s_add_u32 s62, s60, 1
          s_and_b32 s62, s62, 7
          s_lshl_b32 s62, s62, 8
          v_add_u32 v18, s62, v19
          v_lshlrev_b32 v17, 2, v18
          s_mov_b32 s61, 0""")
    a(qk(S0, 0, Qr[0]))
    a("""s_nop 9
         s_waitcnt vmcnt(0) lgkmcnt(0)
         s_barrier""")
    a(".p2align 3")
    a.label("L_att")
    att_body(a, 0)
    att_body(a, 1)
    a(f"""s_add_u32 s61, s61, 1
          s_cmp_lt_u32 s61, 4
          s_cbranch_scc1 L_att""")
    a(pv(O1, 7, 1, S1))
    for r in range(9): a(f"ds_add_f32 v16, v{O1+r} offset:{L_ACC + r*256}")
    a(f"""s_mul_i32 s62, s{sWAVE}, 2304
          v_add_u32 v16, s62, v19
          s_waitcnt lgkmcnt(0)
          s_barrier""")
    for r in range(9): a(f"ds_read_b32 v{O0+r}, v16 offset:{L_ACC + r*256}")
    a(f"""s_lshl_b32 s62, s{sWAVE}, 8
          s_mov_b32 s50, {f2u(2.0**-60):#x}
          s_mov_b32 s51, {f2u(2.0**100):#x}
          s_waitcnt lgkmcnt(0)
          v_max3_f32 v20, abs(v{O0}), abs(v{O0+1}), abs(v{O0+2})
          v_max3_f32 v21, abs(v{O0+3}), abs(v{O0+4}), abs(v{O0+5})
          v_max3_f32 v20, v20, abs(v{O0+6}), abs(v{O0+7})
          v_cmp_lt_f32 s[52:53], s50, v{O0+8}
          v_max3_f32 v20, v20, v21, v{O0+8}
          v_cmp_gt_f32 vcc, s51, v20
          s_and_b64 vcc, vcc, s[52:53]
          s_cmp_eq_u64 vcc, -1
          s_cbranch_scc1 L_att_ok""")
    att_fallback(a)
    a.label("L_att_ok")
    a(f"""v_rcp_f32 v20, v{O0+8}
          s_lshl_b32 s50, s{sB}, 3
          s_add_u32 s50, s50, s{sWAVE}
          s_lshl_b32 s50, s50, 15
          s_lshl_b32 s51, s{sH}, 10
          s_add_u32 s50, s50, s51
          s_add_u32 s50, s50, {OA}""")
    for r in range(8): a(f"v_mul_f32 v{O0+r}, v20, v{O0+r}")
    cvt2(a, 24, O0); cvt2(a, 26, O0+4)
    a(f"""v_permlane32_swap_b32 v24, v26
          v_permlane32_swap_b32 v25, v27
          buffer_store_dwordx4 v[24:27], v14, s[{sWS}:{sWS+3}], s50 offen {sc}""")

L_RED = 0
def wo_dma(a):
    a(f"""v_lshrrev_b32 v1, 3, v0
          v_and_b32 v2, 7, v0
          v_bfe_u32 v3, v1, 1, 1
          s_and_b32 s50, s{sWAVE}, 1
          s_lshl_b32 s50, s50, 1
          v_add_u32 v3, s50, v3
          v_lshlrev_b32 v3, 1, v3
          v_xor_b32 v3, v3, v2
          v_lshlrev_b32 v3, 4, v3
          v_lshl_add_u32 v3, v1, 10, v3
          s_lshl_b32 s50, s{sWAVE}, 13
          s_lshl_b32 s51, s{sCO}, 7
          s_add_u32 s50, s50, s51
          v_add_u32 v13, s50, v3
          s_lshl_b32 s50, s{sWAVE}, 10
          s_add_u32 m0, s50, {L_WO}""")
    for br, p in ((0, 14), (1, 8)):
        srd(a, sW, p, 512*1024)
        a("s_mov_b32 s50, 0")
        for i in range(8):
            a(f"buffer_load_dwordx4 v13, s[{sW}:{sW+3}], s50 offen lds")
            a(f"s_add_u32 m0, m0, 8192\ns_add_u32 s50, s50, 65536")

WF = lambda s, ct: 128 + 16*s + 4*ct
OF = lambda s: 32 + 4*s
PA = lambda ct: 64 + 4*ct
def op_setup(a):
    srd(a, sOUT, 16, 2048*2048)
    a(f"""v_lshrrev_b32 v2, 4, v0
          v_bfe_u32 v4, v0, 2, 2
          v_lshrrev_b32 v5, 1, v4
          v_and_b32 v6, 1, v2
          v_lshl_add_u32 v5, v6, 1, v5
          v_lshlrev_b32 v5, 5, v5
          v_lshl_add_u32 v5, v4, 7, v5
          v_and_b32 v6, 3, v0
          v_lshl_add_u32 v5, v6, 3, v5
          v_lshl_add_u32 v5, v2, 10, v5
          s_lshr_b32 s50, s{sWAVE}, 2
          s_and_b32 s51, s{sWAVE}, 3
          s_lshl_b32 s52, s50, 15
          s_add_u32 s52, s52, {L_WO}
          v_add_u32 v8, s52, v5
          v_and_b32 v1, 15, v0
          v_lshlrev_b32 v5, 4, v1
          v_lshl_add_u32 v5, v2, 9, v5
          s_lshl_b32 s52, s{sTO}, 16
          s_lshr_b32 s53, s51, 1
          s_lshl_b32 s53, s53, 15
          s_add_u32 s52, s52, s53
          s_and_b32 s53, s51, 1
          s_lshl_b32 s53, s53, 8
          s_add_u32 s52, s52, s53
          s_lshl_b32 s53, s50, 14
          s_add_u32 s52, s52, s53
          v_add_u32 v9, s52, v5
          v_and_b32 v5, 1, v2
          v_lshlrev_b32 v5, 5, v5
          v_lshrrev_b32 v6, 1, v2
          v_lshl_add_u32 v5, v6, 4, v5
          v_lshl_add_u32 v5, v1, 11, v5
          s_lshl_b32 s52, s{sTO}, 17
          s_lshl_b32 s53, s51, 15
          s_add_u32 s52, s52, s53
          s_lshl_b32 s53, s{sCO}, 7
          s_add_u32 s52, s52, s53
          s_lshl_b32 s53, s50, 6
          s_add_u32 s52, s52, s53
          v_add_u32 v10, s52, v5
          s_lshl_b32 s52, s{sWAVE}, 11
          v_lshlrev_b32 v5, 4, v0
          v_add_u32 v11, s52, v5
          v_xor_b32 v12, 0x2000, v11""")

def op_wreads(a, br):
    a(f"v_add_u32 v16, {br*65536}, v8" if br else "v_mov_b32 v16, v8")
    for ct in range(1, 4): a(f"v_xor_b32 v{16+ct}, {ct*32}, v16")
    L = []
    for s in range(8):
        for ct in range(4):
            for jj in range(2):
                L.append(f"ds_read_b64_tr_b16 {vr(WF(s,ct)+2*jj,2)}, v{16+ct} offset:{s*4096 + jj*512}")
    return L

def op_oloads(a, br, sc):
    a(f"s_mov_b32 s50, {OA if br else OB}\ns_mov_b32 s51, {(OA if br else OB)+4096}\ns_mov_b32 s52, {(OA if br else OB)+8192}\ns_mov_b32 s53, {(OA if br else OB)+12288}")
    for s in range(8):
        a(f"buffer_load_dwordx4 {vr(OF(s),4)}, v9, s[{sWS}:{sWS+3}], s{50+s//2} offen offset:{(s%2)*2048} {sc}")

def op_finish(a, br):
    lab = a.newlabel("L_op")
    a(f"""s_cmp_ge_u32 s{sWAVE}, 4
          s_cbranch_scc1 {lab}_hi
          ds_write_b128 v11, {vr(PA(2),4)} offset:{L_RED}
          ds_write_b128 v11, {vr(PA(3),4)} offset:{L_RED+1024}
          s_branch {lab}_j""")
    a.label(f"{lab}_hi")
    a(f"""ds_write_b128 v11, {vr(PA(0),4)} offset:{L_RED}
          ds_write_b128 v11, {vr(PA(1),4)} offset:{L_RED+1024}""")
    for r in range(8): a(f"v_mov_b32 v{PA(0)+r}, v{PA(2)+r}")
    a.label(f"{lab}_j")
    a(f"""s_waitcnt lgkmcnt(0)
          s_barrier
          ds_read_b128 {vr(PA(2),4)}, v12 offset:{L_RED}
          ds_read_b128 {vr(PA(3),4)}, v12 offset:{L_RED+1024}
          s_waitcnt lgkmcnt(0)""")
    for r in range(8): a(f"v_add_f32 v{PA(0)+r}, v{PA(0)+r}, v{PA(2)+r}")
    cvt2(a, 24, PA(0)); cvt2(a, 26, PA(1))
    a(f"""v_permlane16_swap_b32 v24, v26
          v_permlane16_swap_b32 v25, v27
          buffer_store_dwordx4 v[24:27], v10, s[{sOUT}:{sOUT+3}], 0 offen offset:{0 if br else 1024}""")

def op_mfmas(s):
    return [f"v_mfma_f32_16x16x32_bf16 {vr(PA(ct),4)}, {vr(WF(s,ct),4)}, {vr(OF(s),4)}, {vr(PA(ct),4) if s else 0}" for ct in range(4)]

def phase_out_simple(a, sc):
    wo_dma(a)
    op_setup(a)
    a("s_waitcnt vmcnt(0)\ns_barrier")
    for br in range(2):
        op_oloads(a, br, sc)
        for l in op_wreads(a, br): a(l)
        a("s_waitcnt lgkmcnt(0)")
        for s in range(8):
            a(f"s_waitcnt vmcnt({7-s})")
            for m in op_mfmas(s): a(m)
        op_finish(a, br)
        if br == 0: a("s_barrier")

HEAD = open("cdna_kernels/" + NAME + ".s.ref").read().split("; Override launch")[0]
def kd(name):
    return f""".amdhsa_kernel {name}
  .amdhsa_next_free_vgpr 256
  .amdhsa_next_free_sgpr 96
  .amdhsa_accum_offset 256
  .amdhsa_group_segment_fixed_size 0
  .amdhsa_kernarg_size 72
  .amdhsa_user_sgpr_count 2
  .amdhsa_user_sgpr_kernarg_segment_ptr 1
  .amdhsa_system_sgpr_workgroup_id_x 1
.end_amdhsa_kernel
"""
def emit(kernels, path):
    out = [HEAD.rstrip()]
    if len(kernels) == 1:
        out.append(f"; @launch grid=(256,1,1) block=(512,1,1) lds={kernels[0][2]}")
    else:
        for n, _, lds in kernels: out.append(f"; @launch kernel={n} grid=(256,1,1) block=(512,1,1) lds={lds}")
    out.append('.amdgcn_target "amdgcn-amd-amdhsa--gfx950"\n.text')
    for n, a, _ in kernels:
        out.append(f".globl {n}\n.p2align 8\n.type {n},@function\n{n}:")
        for l in fix_hazards(a.lines, verbose="-v" in sys.argv):
            out.append(l if l.endswith(":") else "    " + l)
    out.append('.section .rodata,"a"')
    for n, _, _ in kernels:
        out.append(".p2align 6\n" + kd(n))
    open(path, "w").write("\n".join(out))

def build_split(path):
    ks = []
    for n, fn, lds in (("qkv_kernel", phase_qkv, 4*SLOT), ("att_kernel", phase_att, L_WO), (NAME + "_kernel", phase_out_simple, ATT_LDS)):
        a = Asm(); end = "L_end_" + n[:3]
        entry(a, end); fn(a, ""); a.label(end); a("s_endpgm")
        ks.append((n, a, lds))
    emit(ks, path)

if __name__ == "__main__":
    build_split("cdna_kernels/" + NAME + ".s")
```

```python
import sys, struct
from asmlib import *

NAME = "concat_heads__softmax_full_mha__sliding_local_dilated__prompt"
MB = 1 << 20
QF, KF, VF, OA, OB, FL = 0, 2*MB, 4*MB, 6*MB, 8*MB, 10*MB
WS_BYTES = 11*MB
def f2u(x): return struct.unpack("<I", struct.pack("<f", x))[0]
LOG2E = 1.4426950408889634
CSC = f2u(0.25*LOG2E)
SLOT = 34816; XREG = 10240
sX, sW, sWS, sOUT = 24, 28, 32, 36
sWAVE = 40
sTB, sHG, sROT = 41, 42, 43
sH, sB = 44, 45
sTO, sCO = 46, 47
sC = 48
T0 = 50

STAMP = "-stamp" in sys.argv
ST = 10*MB + 512*1024
def stamp(a, i):
    if STAMP: a(f"s_memtime s[70:71]\ns_waitcnt lgkmcnt(0)\nv_writelane_b32 v7, s70, {i}")
def stamp_flush(a, lo, hi):
    if not STAMP: return
    a(f"""s_lshl_b32 s50, s2, 3
          s_add_u32 s50, s50, s{sWAVE}
          s_lshl_b32 s50, s50, 8
          s_add_u32 s50, s50, {ST}
          v_lshlrev_b32 v1, 2, v0
          s_mov_b32 exec_lo, {(((1<<hi)-(1<<lo)) & 0xffffffff):#x}
          s_mov_b32 exec_hi, {(((1<<hi)-(1<<lo)) >> 32):#x}
          buffer_store_dword v7, v1, s[{sWS}:{sWS+3}], s50 offen
          s_mov_b64 exec, -1""")

def srd(a, d, p, nbytes):
    a(f"s_mov_b32 s{d}, s{p}\ns_mov_b32 s{d+1}, s{p+1}\ns_mov_b32 s{d+2}, {nbytes}\ns_mov_b32 s{d+3}, 0x20000")

def entry(a, end_label, st0=0):
    a(f"""s_cmp_ge_u32 s2, 256
          s_cbranch_scc1 {end_label}""")
    stamp(a, st0)
    a(f"""s_load_dwordx16 s[4:19], s[0:1], 0
          s_load_dwordx2 s[20:21], s[0:1], 64
          v_lshrrev_b32 v1, 6, v0
          v_and_b32 v0, 63, v0
          v_readfirstlane_b32 s{sWAVE}, v1
          s_and_b32 s50, s2, 7
          s_lshr_b32 s51, s2, 3
          s_lshr_b32 s52, s51, 2
          s_and_b32 s53, s51, 3
          s_lshr_b32 s54, s50, 1
          s_lshl_b32 s54, s54, 3
          s_add_u32 s{sTB}, s54, s52
          s_and_b32 s54, s50, 1
          s_lshl_b32 s54, s54, 2
          s_add_u32 s{sHG}, s54, s53
          s_lshl_b32 s54, s53, 1
          s_add_u32 s{sROT}, s54, s52
          s_and_b32 s{sROT}, s{sROT}, 7
          s_lshl_b32 s54, s50, 2
          s_add_u32 s{sH}, s54, s53
          s_mov_b32 s{sB}, s52
          s_lshr_b32 s55, s51, 3
          s_add_u32 s{sTO}, s54, s55
          s_and_b32 s{sCO}, s51, 7
          s_mov_b32 s{sC}, {CSC:#x}
          s_waitcnt lgkmcnt(0)""")
    srd(a, sWS, 20, WS_BYTES)

ACC = 32
aQ = lambda i: ACC + 4*i
aK = lambda i: ACC + 16 + 4*(i+1)
aV = lambda i: ACC + 36 + 4*(i+1)
F0, F1 = 88, 120
fX = lambda F, i: F + 4*(i+1)
fW = lambda F, seg: F + 20 + 4*seg

def loader(a):
    srd(a, sX, 4, 2*MB)
    srd(a, sW, 6, 512*3072)
    a(f"""s_sub_u32 s50, s{sWAVE}, 4
          v_lshrrev_b32 v1, 3, v0
          v_and_b32 v2, 7, v0
          s_and_b32 s51, s50, 1
          s_lshl_b32 s52, s51, 2
          v_lshrrev_b32 v3, 1, v1
          v_add_u32 v4, s52, v3
          v_xor_b32 v4, v4, v2
          v_lshlrev_b32 v4, 4, v4
          v_lshl_add_u32 v4, v1, 10, v4
          s_lshl_b32 s53, s{sTB}, 16
          s_lshl_b32 s54, s50, 13
          s_add_u32 s54, s53, s54
          v_add_u32 v8, s54, v4
          s_lshl_b32 s52, s50, 1
          v_add_u32 v4, s52, v3
          v_xor_b32 v4, v4, v2
          v_and_b32 v4, 7, v4
          v_lshlrev_b32 v4, 4, v4
          v_lshl_add_u32 v4, v1, 10, v4
          s_max_u32 s53, s53, 16384
          s_sub_u32 s53, s53, 16384
          s_lshl_b32 s54, s50, 12
          s_add_u32 s54, s53, s54
          v_add_u32 v9, s54, v4
          ; W rows
          v_and_b32 v4, 1, v3
          s_lshl_b32 s52, s51, 1
          v_add_u32 v4, s52, v4
          v_lshlrev_b32 v4, 1, v4
          v_xor_b32 v4, v4, v2
          v_lshlrev_b32 v4, 4, v4
          v_mul_u32_u24 v5, 3072, v1
          v_add_u32 v4, v4, v5
          s_mul_i32 s53, s50, 24576
          s_lshl_b32 s54, s{sHG}, 7
          s_add_u32 s54, s53, s54
          v_add_u32 v10, s54, v4
          s_lshl_b32 s56, s50, 10
          s_add_u32 s56, s56, 2048
          s_lshl_b32 s57, s50, 9
          s_mul_i32 s58, s50, 3072
          s_add_u32 s58, s58, {XREG}
          s_mov_b32 s59, 0
          s_mov_b32 s60, 0
          s_mov_b32 s61, s{sROT}""")
    a.label("L_ld_loop")
    a(f"""s_cmp_lt_u32 s59, 3
          s_cbranch_scc1 L_ld_nowait
          s_waitcnt vmcnt(16)
          s_barrier""")
    a.label("L_ld_nowait")
    if STAMP: a("s_add_u32 m0, s59, 32"); stamp(a, "m0")
    a(f"""s_lshl_b32 s62, s61, 7
          s_mul_i32 s63, s61, {64*3072}
          s_add_u32 m0, s60, s56
          s_add_u32 s64, s62, 32768
          buffer_load_dwordx4 v8, s[{sX}:{sX+3}], s62 offen lds
          s_add_u32 m0, m0, 4096
          s_add_u32 s65, s63, {32*3072}
          buffer_load_dwordx4 v8, s[{sX}:{sX+3}], s64 offen lds
          s_add_u32 m0, s60, s58
          s_cmp_lt_u32 s59, 8
          buffer_load_dwordx4 v10, s[{sW}:{sW+3}], s63 offen lds
          buffer_load_dwordx4 v10, s[{sW}:{sW+3}], s63 offen offset:1024 lds
          buffer_load_dwordx4 v10, s[{sW}:{sW+3}], s63 offen offset:2048 lds
          s_cbranch_scc1 L_ld_nohalo
          s_add_u32 m0, s60, s57
          s_mov_b32 exec_hi, 0
          buffer_load_dwordx4 v9, s[{sX}:{sX+3}], s62 offen lds
          s_mov_b32 exec_hi, -1""")
    a.label("L_ld_nohalo")
    a(f"""s_add_u32 s66, s60, s58
          s_add_u32 m0, s66, 12288
          s_add_u32 s61, s61, 1
          buffer_load_dwordx4 v10, s[{sW}:{sW+3}], s65 offen lds
          buffer_load_dwordx4 v10, s[{sW}:{sW+3}], s65 offen offset:1024 lds
          buffer_load_dwordx4 v10, s[{sW}:{sW+3}], s65 offen offset:2048 lds
          s_and_b32 s61, s61, 7
          s_add_u32 s60, s60, {SLOT}
          s_cmp_eq_u32 s60, {4*SLOT}
          s_cselect_b32 s60, 0, s60
          s_add_u32 s59, s59, 1
          s_cmp_eq_u32 s59, 8
          s_cbranch_scc0 L_ld_noswitch
          s_mov_b32 s{sX}, s10
          s_mov_b32 s{sX+1}, s11
          s_mov_b32 s{sW}, s12
          s_mov_b32 s{sW+1}, s13""")
    a.label("L_ld_noswitch")
    a(f"""s_cmp_lt_u32 s59, 16
          s_cbranch_scc1 L_ld_loop
          s_waitcnt vmcnt(18)
          s_barrier""")
    stamp(a, 48)
    a("s_waitcnt vmcnt(9)\ns_barrier")
    stamp(a, 49)
    a("s_waitcnt vmcnt(0)\ns_barrier")
    stamp(a, 50)

def gemm_mfmas(F, halo):
    L = []
    for i in range(-1 if halo else 0, 4):
        if i >= 0: L.append(f"v_mfma_f32_16x16x32_bf16 {vr(aQ(i),4)}, {vr(fW(F,0),4)}, {vr(fX(F,i),4)}, {vr(aQ(i),4)}")
        L.append(f"v_mfma_f32_16x16x32_bf16 {vr(aK(i),4)}, {vr(fW(F,1),4)}, {vr(fX(F,i),4)}, {vr(aK(i),4)}")
        L.append(f"v_mfma_f32_16x16x32_bf16 {vr(aV(i),4)}, {vr(fX(F,i),4)}, {vr(fW(F,2),4)}, {vr(aV(i),4)}")
    return L
def gemm_reads(F, s, halo):
    L = []
    for seg in range(3):
        for jj in range(2):
            L.append(f"ds_read_b64_tr_b16 {vr(fW(F,seg)+2*jj,2)}, v13 offset:{XREG + s*12288 + seg*1024 + jj*512}")
    for i in range(-1 if halo else 0, 4):
        L.append(f"ds_read_b128 {vr(fX(F,i),4)}, v{11+s} offset:{(i+1)*2048}")
    return L
def interleave(a, M, R, per=2):
    R = list(R)
    for m in M:
        a(m)
        for _ in range(per):
            if R: a(R.pop(0))
    for r in R: a(r)

def gemm_loop(a, halo, tag):
    for r in range(ACC, ACC+56): a(f"v_mov_b32 v{r}, 0")
    rng = range(F1, F1+32) if not halo else list(range(F1, F1+4)) + list(range(F1+20, F1+32))
    for r in rng: a(f"v_mov_b32 v{r}, 0")
    a("s_mov_b32 s59, 0")
    a.label(f"L_g_{tag}")
    a(f"""v_add_u32 v11, s60, v8
          v_add_u32 v12, s60, v9
          v_add_u32 v13, s60, v10
          s_add_u32 s60, s60, {SLOT}
          s_cmp_eq_u32 s60, {4*SLOT}
          s_cselect_b32 s60, 0, s60
          s_add_u32 s59, s59, 1
          s_barrier""")
    interleave(a, gemm_mfmas(F1, halo), gemm_reads(F0, 0, halo))
    a("s_waitcnt lgkmcnt(0)")
    interleave(a, gemm_mfmas(F0, halo), gemm_reads(F1, 1, halo))
    a(f"""s_cmp_lt_u32 s59, 8
          s_waitcnt lgkmcnt(0)
          s_cbranch_scc1 L_g_{tag}""")
    for m in gemm_mfmas(F1, halo): a(m)

def cvt2(a, d, s):
    a(f"v_cvt_pk_bf16_f32 v{d}, v{s}, v{s+1}\nv_cvt_pk_bf16_f32 v{d+1}, v{s+2}, v{s+3}")

def consumer(a, sc):
    a(f"""v_and_b32 v1, 15, v0
          v_lshrrev_b32 v2, 4, v0
          v_lshrrev_b32 v3, 1, v1
          v_xor_b32 v3, v3, v2
          v_lshlrev_b32 v3, 4, v3
          v_lshl_add_u32 v8, v1, 7, v3
          v_xor_b32 v9, 64, v8
          v_bfe_u32 v4, v0, 2, 2
          v_lshrrev_b32 v5, 1, v4
          v_and_b32 v6, 1, v2
          v_lshl_add_u32 v5, v6, 1, v5
          v_xor_b32 v5, s{sWAVE}, v5
          v_lshlrev_b32 v5, 5, v5
          v_lshl_add_u32 v5, v4, 7, v5
          v_and_b32 v6, 3, v0
          v_lshl_add_u32 v5, v6, 3, v5
          v_mul_u32_u24 v6, 3072, v2
          v_add_u32 v10, v5, v6
          v_lshlrev_b32 v14, 4, v0
          s_mov_b32 s60, 0""")
    stamp(a, 1)
    gemm_loop(a, False, "A")
    stamp(a, 2)
    a(f"""s_lshl_b32 s50, s{sHG}, 2
          s_add_u32 s50, s50, s{sWAVE}
          s_lshl_b32 s51, s50, 16
          s_lshl_b32 s52, s{sTB}, 11
          s_add_u32 s51, s51, s52
          s_add_u32 s52, s51, {KF}
          s_add_u32 s53, s51, {VF}""")
    P = F0
    for (acc, so, scale, base) in ((aK, 52, False, P), (aV, 53, False, P+8), (aQ, 51, True, P+16)):
        if scale:
            for r in range(aQ(0), aQ(0)+16): a(f"v_mul_f32 v{r}, s{sC}, v{r}")
        for i in range(4): cvt2(a, base+2*i, acc(i))
        for pr in range(2):
            b = base + 4*pr
            a(f"v_permlane16_swap_b32 v{b}, v{b+2}\nv_permlane16_swap_b32 v{b+1}, v{b+3}")
        for pr in range(2):
            a(f"buffer_store_dwordx4 {vr(base+4*pr,4)}, v14, s[{sWS}:{sWS+3}], s{so} offen offset:{pr*1024} {sc}")
    return

def local_attn(a, sc):
    pQ = lambda i: 88 + 2*i
    pK = lambda i: 96 + 2*(i+1)
    pV = lambda i: 106 + 2*(i+1)
    Sx = lambda i: 120 + 8*i
    for i in range(-1, 4): cvt2(a, pK(i), aK(i))
    for i in range(4): cvt2(a, pQ(i), aQ(i))
    for i in range(4):
        a(f"v_mfma_f32_16x16x16_bf16 {vr(Sx(i),4)}, {vr(pK(i-1),2)}, {vr(pQ(i),2)}, {vr(24 if i==0 else 20,4)}")
        a(f"v_mfma_f32_16x16x16_bf16 {vr(Sx(i)+4,4)}, {vr(pK(i),2)}, {vr(pQ(i),2)}, v[16:19]")
    for i in range(-1, 4): cvt2(a, pV(i), aV(i))
    M = lambda i: 32 + i
    Tm = lambda i: 36 + i
    for i in range(4):
        s = Sx(i)
        a(f"v_max3_f32 v{M(i)}, v{s}, v{s+1}, v{s+2}\nv_max3_f32 v{Tm(i)}, v{s+3}, v{s+4}, v{s+5}")
    for i in range(4):
        s = Sx(i)
        a(f"v_max3_f32 v{M(i)}, v{M(i)}, v{s+6}, v{s+7}")
    for i in range(4): a(f"v_max_f32 v{M(i)}, v{M(i)}, v{Tm(i)}")
    for sw in ("v_permlane32_swap_b32", "v_permlane16_swap_b32"):
        for i in range(4): a(f"v_mov_b32 v{Tm(i)}, v{M(i)}")
        for i in range(4): a(f"{sw} v{M(i)}, v{Tm(i)}")
        for i in range(4): a(f"v_max_f32 v{M(i)}, v{M(i)}, v{Tm(i)}")
    for i in range(4): a(f"v_mul_f32 v{M(i)}, s{sC}, v{M(i)}")
    pP = lambda i: 40 + 4*i
    oO = lambda i: 56 + 4*i
    oL = lambda i: 72 + 4*i
    for i in range(4):
        s = Sx(i)
        for r in range(8): a(f"v_fma_f32 v{s+r}, v{s+r}, s{sC}, -v{M(i)}")
        for r in range(8): a(f"v_exp_f32 v{s+r}, v{s+r}")
        cvt2(a, pP(i), s); cvt2(a, pP(i)+2, s+4)
        if i > 0:
            a(f"v_mfma_f32_16x16x32_bf16 {vr(oL(i-1),4)}, v[28:31], {vr(pP(i-1),4)}, 0")
            a(f"v_mfma_f32_16x16x32_bf16 {vr(oO(i-1),4)}, {vr(pV(i-2),4)}, {vr(pP(i-1),4)}, 0")
    a(f"v_mfma_f32_16x16x32_bf16 {vr(oL(3),4)}, v[28:31], {vr(pP(3),4)}, 0")
    a(f"v_mfma_f32_16x16x32_bf16 {vr(oO(3),4)}, {vr(pV(2),4)}, {vr(pP(3),4)}, 0")
    a(f"""s_lshl_b32 s50, s{sHG}, 2
          s_add_u32 s50, s50, s{sWAVE}
          s_lshl_b32 s50, s50, 10
          s_lshl_b32 s51, s{sTB}, 16
          s_add_u32 s50, s50, s51
          s_add_u32 s50, s50, {OB}
          s_add_u32 s51, s50, 32768""")
    for i in range(4):
        a(f"v_rcp_f32 v{oL(i)}, v{oL(i)}")
    for i in range(4):
        for r in range(4): a(f"v_mul_f32 v{oO(i)+r}, v{oL(i)}, v{oO(i)+r}")
        cvt2(a, 88+2*i, oO(i))
    for pr in range(2):
        b = 88 + 4*pr
        a(f"v_permlane16_swap_b32 v{b}, v{b+2}\nv_permlane16_swap_b32 v{b+1}, v{b+3}")
    for pr in range(2):
        a(f"buffer_store_dwordx4 {vr(88+4*pr,4)}, v14, s[{sWS}:{sWS+3}], s{50+pr} offen {sc}")

def local_masks(a):
    NEG = f2u(-1e30)
    a(f"""v_and_b32 v1, 15, v0
          v_lshrrev_b32 v2, 4, v0
          v_lshlrev_b32 v2, 2, v2
          v_sub_u32 v1, v1, v2
          v_mov_b32 v3, {NEG:#x}
          s_cmp_eq_u32 s{sTB}, 0
          s_cselect_b64 s[52:53], -1, 0""")
    for r in range(4):
        a(f"""v_subrev_u32 v4, {r}, v1
              v_and_b32 v5, -15, v4
              v_cmp_eq_u32 vcc, 0, v5
              v_add_u32 v4, 16, v4
              v_and_b32 v5, -15, v4
              v_cndmask_b32 v{16+r}, v3, 0, vcc
              v_cmp_eq_u32 vcc, 0, v5
              v_mov_b32 v{28+r}, 0x3f803f80
              v_cndmask_b32 v{20+r}, v3, 0, vcc
              v_cndmask_b32 v{24+r}, v{20+r}, v3, s[52:53]""")

def phase_qkv(a, sc):
    a(f"""s_cmp_ge_u32 s{sWAVE}, 4
          s_cbranch_scc1 L_loader""")
    local_masks(a)
    consumer(a, sc)
    stamp(a, 3)
    gemm_loop(a, True, "B")
    stamp(a, 4)
    local_attn(a, sc)
    a("s_branch L_qkv_done")
    a.label("L_loader")
    loader(a)
    a.label("L_qkv_done")
    stamp(a, 5)
    stamp_flush(a, 0, 8); stamp_flush(a, 32, 56)

S0, S1, O0, O1, CC = 32, 48, 64, 80, 96
Qr = (112, 116); NM = (120, 122); AC = 124; ZZ = 126; IDX = 31
KR = lambda t: 160 + 4*t
VR = lambda t, blk: 192 + 8*t + 4*blk
L_XA, L_XB, L_XL = 0, 8192, 16384
L_M = L_XL + 4
L_Q = 24576
L_WO = 32768
ATT_LDS = L_WO + 131072

def v_const_init(a, regs):
    a(f"""v_and_b32 v1, 27, v0
          v_cmp_eq_u32 vcc, 16, v1
          v_mov_b32 v2, 0x3f803f80
          v_cndmask_b32 v2, 0, v2, vcc""")
    for r in regs: a(f"v_mov_b32 v{r}, v2")

def att_loads(a, sc):
    a(f"""s_add_u32 s50, s{sWAVE}, s{sB}
          s_and_b32 s50, s50, 7
          s_lshl_b32 s50, s50, 13
          s_lshl_b32 s51, s{sH}, 16
          s_add_u32 s50, s50, s51
          s_add_u32 s52, s50, {KF}
          s_add_u32 s53, s52, 4096
          s_add_u32 s54, s50, {VF}
          s_add_u32 s55, s54, 4096
          s_lshl_b32 s56, s{sB}, 3
          s_add_u32 s56, s56, s{sWAVE}
          s_lshl_b32 s56, s56, 10
          s_add_u32 s56, s56, s51
          v_lshlrev_b32 v14, 4, v0
          v_and_b32 v15, 0x2f0, v14
          s_mov_b32 s58, 0xffff
          s_mov_b32 s59, 0xffff
          buffer_load_dwordx4 {vr(Qr[0],4)}, v14, s[{sWS}:{sWS+3}], s56 offen {sc}""")
    for t in range(8):
        a(f"buffer_load_dwordx4 {vr(KR(t),4)}, v14, s[{sWS}:{sWS+3}], s{52+t//4} offen offset:{(t%4)*1024} {sc}")
        a("s_mov_b64 exec, s[58:59]")
        for blk in range(2):
            a(f"buffer_load_dwordx4 {vr(VR(t,blk),4)}, v15, s[{sWS}:{sWS+3}], s{54+t//4} offen offset:{(t%4)*1024+blk*256} {sc}")
        a("s_mov_b64 exec, -1")

def max16(a, S, d, t):
    a(f"""v_max3_f32 v{d}, v{S}, v{S+1}, v{S+2}
          v_max3_f32 v{t}, v{S+3}, v{S+4}, v{S+5}
          v_max3_f32 v{d}, v{d}, v{S+6}, v{S+7}
          v_max3_f32 v{t}, v{t}, v{S+8}, v{S+9}
          v_max3_f32 v{d}, v{d}, v{S+10}, v{S+11}
          v_max3_f32 v{t}, v{t}, v{S+12}, v{S+13}
          v_max3_f32 v{d}, v{d}, v{S+14}, v{S+15}
          v_max_f32 v{d}, v{d}, v{t}""")

def qk(S, t, q): return f"v_mfma_f32_32x32x16_bf16 {vr(S,16)}, {vr(KR(t),4)}, {vr(q,4)}, {vr(CC,16)}"
def pv(O, t, blk, S): return f"v_smfmac_f32_32x32x32_bf16 {vr(O,16)}, {vr(VR(t,blk),4)}, {vr(S+8*blk,8)}, v{IDX}"
def zero16(O): return f"v_mfma_f32_32x32x8_bf16 {vr(O,16)}, {vr(ZZ,2)}, {vr(ZZ,2)}, 0"
def cset(p): return f"v_mfma_f32_32x32x8_bf16 {vr(CC,16)}, {vr(AC,2)}, {vr(NM[p],2)}, 0"

def att_body(a, p):
    O, Op = (O0, O1) if p == 0 else (O1, O0)
    for t in range(8):
        Sa, Sb = (S0, S1) if t % 2 == 0 else (S1, S0)
        extra = {}
        def ex(i, s): extra.setdefault(i, []).append(s)
        ex(1, pv(Op, 7, 1, Sb) if t == 0 else pv(O, t-1, 1, Sb))
        ex(4, qk(Sb, t+1, Qr[p]) if t < 7 else qk(Sb, 0, Qr[1-p]))
        ex(10, pv(O, t, 0, Sa))
        if t == 1:
            ex(0, f"ds_write_b128 v16, {vr(Op,4)} offset:{L_XA}")
            ex(2, f"ds_write_b128 v16, {vr(Op+4,4)} offset:{L_XB}")
            ex(3, f"ds_write_b32 v16, v{Op+8} offset:{L_XL}")
            ex(5, f"ds_read_b128 {vr(Qr[1-p],4)}, v17 offset:{L_Q}")
            ex(6, f"ds_read_b32 v{NM[1-p]}, v17 offset:{L_M}")
            ex(7, "s_add_u32 s60, s60, " + ("2048" if p == 0 else "s63"))
            ex(8, "s_and_b32 s60, s60, 0x1fff")
            ex(9, "v_add_u32 v16, s60, v14")
            ex(11, "s_add_u32 s62, s62, 1024")
            ex(12, "s_and_b32 s62, s62, 0x1fff")
            ex(13, "v_add_u32 v17, s62, v14")
        if t == 2:
            ex(7, "s_waitcnt lgkmcnt(0)")
            ex(7, "s_barrier")
            ex(8, f"ds_read_b128 {vr(Op,4)}, v16 offset:{L_XA}")
            ex(9, f"ds_read_b128 {vr(Op+4,4)}, v16 offset:{L_XB}")
            ex(11, f"ds_read_b32 v{Op+8}, v16 offset:{L_XL}")
        if t == 6:
            ex(6, "s_waitcnt lgkmcnt(0)")
            ex(7, cset(1-p))
        for i in range(16):
            a(f"v_exp_f32 v{Sa+i}, v{Sa+i}")
            for s in extra.get(i, []): a(s)

def att_fallback(a):
    a(f"""s_lshl_b32 s51, s{sH}, 16
          s_add_u32 s52, s51, {KF}
          s_add_u32 s54, s51, {VF}
          s_add_u32 s55, s52, 65536
          s_lshl_b32 s53, s62, 10
          v_add_u32 v17, s53, v14
          ds_read_b128 {vr(Qr[0],4)}, v17 offset:{L_Q}
          v_mov_b32 v20, 0xff800000
          s_mov_b32 s53, s52""")
    a.label("L_fb1")
    a(f"""buffer_load_dwordx4 {vr(KR(0),4)}, v14, s[{sWS}:{sWS+3}], s53 offen sc1
          s_add_u32 s53, s53, 1024
          s_waitcnt vmcnt(0) lgkmcnt(0)
          v_mfma_f32_32x32x16_bf16 {vr(S0,16)}, {vr(KR(0),4)}, {vr(Qr[0],4)}, 0""")
    max16(a, S0, 21, 22)
    a(f"""v_max_f32 v20, v20, v21
          s_cmp_lt_u32 s53, s55
          s_cbranch_scc1 L_fb1
          v_mov_b32 v21, v20
          v_permlane32_swap_b32 v20, v21
          v_max_f32 v20, v20, v21""")
    for r in range(16): a(f"v_sub_f32 v{CC+r}, 0, v20\nv_mov_b32 v{O0+r}, 0")
    a.label("L_fb2")
    a(f"""buffer_load_dwordx4 {vr(KR(0),4)}, v14, s[{sWS}:{sWS+3}], s52 offen sc1
          s_mov_b64 exec, s[58:59]
          buffer_load_dwordx4 {vr(VR(0,0),4)}, v15, s[{sWS}:{sWS+3}], s54 offen sc1
          buffer_load_dwordx4 {vr(VR(0,1),4)}, v15, s[{sWS}:{sWS+3}], s54 offen offset:256 sc1
          s_mov_b64 exec, -1
          s_add_u32 s52, s52, 1024
          s_add_u32 s54, s54, 1024
          s_waitcnt vmcnt(0)""")
    a(qk(S0, 0, Qr[0]))
    for i in range(16): a(f"v_exp_f32 v{S0+i}, v{S0+i}")
    a(pv(O0, 0, 0, S0)); a(pv(O0, 0, 1, S0))
    a(f"""s_cmp_lt_u32 s52, s55
          s_nop 7
          s_nop 7
          s_cbranch_scc1 L_fb2""")

def phase_att(a, sc):
    v_const_init(a, range(192, 256))
    att_loads(a, sc)
    a(f"""v_mov_b32 v{IDX}, 0xdddd
          v_mov_b32 v{ZZ}, 0
          v_mov_b32 v{ZZ+1}, 0
          v_mov_b32 v{NM[0]+1}, 0
          v_mov_b32 v{NM[1]+1}, 0
          v_mov_b32 v{AC+1}, 0
          v_cmp_gt_u32 vcc, 32, v0
          v_mov_b32 v2, 0x3f80
          s_lshl_b32 s60, s{sWAVE}, 10
          v_cndmask_b32 v{AC}, 0, v2, vcc
          v_add_u32 v16, s60, v14""")
    a(zero16(O0)); a(zero16(O1)); a(zero16(S1))
    a(f"""s_add_u32 s62, s60, 1024
          s_and_b32 s62, s62, 0x1fff
          v_add_u32 v17, s62, v14
          s_waitcnt vmcnt(23)
          v_mfma_f32_32x32x16_bf16 {vr(S0,16)}, {vr(KR(0),4)}, {vr(Qr[0],4)}, 0
          ds_write_b128 v16, {vr(Qr[0],4)} offset:{L_Q}""")
    max16(a, S0, 20, 21)
    a(f"""v_mov_b32 v21, v20
          v_permlane32_swap_b32 v20, v21
          v_max_f32 v20, v20, v21
          v_cvt_pk_bf16_f32 v{NM[0]}, -v20, 0
          ds_write_b32 v16, v{NM[0]} offset:{L_M}""")
    a(cset(0))
    a("s_mov_b32 s61, 0\ns_mov_b32 s63, 2048")
    a(qk(S0, 0, Qr[0]))
    a("""s_nop 9
         s_waitcnt vmcnt(0) lgkmcnt(0)
         s_barrier""")
    stamp(a, 9)
    a(".p2align 3")
    a.label("L_att")
    att_body(a, 0)
    att_body(a, 1)
    a(f"""s_add_u32 s61, s61, 1
          s_cmp_eq_u32 s61, 3
          s_cselect_b32 s63, 1024, s63
          s_cmp_lt_u32 s61, 4
          s_cbranch_scc1 L_att""")
    a(pv(O1, 7, 1, S1))
    stamp(a, 10)
    a(f"""s_add_u32 s62, s{sWAVE}, 7
          s_and_b32 s62, s62, 7
          s_mov_b32 s50, {f2u(2.0**-60):#x}
          s_mov_b32 s51, {f2u(2.0**100):#x}""")
    for r in range(9): a(f"v_add_f32 v{O0+r}, v{O0+r}, v{O1+r}")
    a(f"""v_max3_f32 v20, abs(v{O0}), abs(v{O0+1}), abs(v{O0+2})
          v_max3_f32 v21, abs(v{O0+3}), abs(v{O0+4}), abs(v{O0+5})
          v_max3_f32 v20, v20, abs(v{O0+6}), abs(v{O0+7})
          v_cmp_lt_f32 s[52:53], s50, v{O0+8}
          v_max3_f32 v20, v20, v21, v{O0+8}
          v_cmp_gt_f32 vcc, s51, v20
          s_and_b64 vcc, vcc, s[52:53]
          s_cmp_eq_u64 vcc, -1
          s_cbranch_scc1 L_att_ok""")
    att_fallback(a)
    a.label("L_att_ok")
    stamp(a, 11)
    a(f"""v_rcp_f32 v20, v{O0+8}
          s_lshl_b32 s50, s{sB}, 3
          s_add_u32 s50, s50, s62
          s_lshl_b32 s50, s50, 15
          s_lshl_b32 s51, s{sH}, 10
          s_add_u32 s50, s50, s51
          s_add_u32 s50, s50, {OA}""")
    for r in range(8): a(f"v_mul_f32 v{O0+r}, v20, v{O0+r}")
    cvt2(a, 24, O0); cvt2(a, 26, O0+4)
    a(f"""v_permlane32_swap_b32 v24, v26
          v_permlane32_swap_b32 v25, v27
          buffer_store_dwordx4 v[24:27], v14, s[{sWS}:{sWS+3}], s50 offen {sc}""")
    stamp_flush(a, 8, 16)

L_RED = 0
def wo_dma(a):
    a(f"""v_lshrrev_b32 v1, 3, v0
          v_and_b32 v2, 7, v0
          v_bfe_u32 v3, v1, 1, 1
          s_and_b32 s50, s{sWAVE}, 1
          s_lshl_b32 s50, s50, 1
          v_add_u32 v3, s50, v3
          v_lshlrev_b32 v3, 1, v3
          v_xor_b32 v3, v3, v2
          v_lshlrev_b32 v3, 4, v3
          v_lshl_add_u32 v3, v1, 10, v3
          s_lshl_b32 s50, s{sWAVE}, 13
          s_lshl_b32 s51, s{sCO}, 7
          s_add_u32 s50, s50, s51
          v_add_u32 v13, s50, v3
          s_lshl_b32 s50, s{sWAVE}, 10
          s_add_u32 m0, s50, {L_WO}""")
    for br, p in ((0, 14), (1, 8)):
        srd(a, sW, p, 512*1024)
        a("s_mov_b32 s50, 0")
        for i in range(8):
            a(f"buffer_load_dwordx4 v13, s[{sW}:{sW+3}], s50 offen lds")
            a(f"s_add_u32 m0, m0, 8192\ns_add_u32 s50, s50, 65536")

WF = lambda s, ct: 128 + 16*s + 4*ct
OF = lambda s: 32 + 4*s
PA = lambda ct: 64 + 4*ct
def op_setup(a):
    srd(a, sOUT, 16, 2048*2048)
    a(f"""v_lshrrev_b32 v2, 4, v0
          v_bfe_u32 v4, v0, 2, 2
          v_lshrrev_b32 v5, 1, v4
          v_and_b32 v6, 1, v2
          v_lshl_add_u32 v5, v6, 1, v5
          v_lshlrev_b32 v5, 5, v5
          v_lshl_add_u32 v5, v4, 7, v5
          v_and_b32 v6, 3, v0
          v_lshl_add_u32 v5, v6, 3, v5
          v_lshl_add_u32 v5, v2, 10, v5
          s_lshr_b32 s50, s{sWAVE}, 2
          s_and_b32 s51, s{sWAVE}, 3
          s_lshl_b32 s52, s50, 15
          s_add_u32 s52, s52, {L_WO}
          v_add_u32 v8, s52, v5
          v_and_b32 v1, 15, v0
          v_lshlrev_b32 v5, 4, v1
          v_lshl_add_u32 v5, v2, 9, v5
          s_lshl_b32 s52, s{sTO}, 16
          s_lshr_b32 s53, s51, 1
          s_lshl_b32 s53, s53, 15
          s_add_u32 s52, s52, s53
          s_and_b32 s53, s51, 1
          s_lshl_b32 s53, s53, 8
          s_add_u32 s52, s52, s53
          s_lshl_b32 s53, s50, 14
          s_add_u32 s52, s52, s53
          v_add_u32 v9, s52, v5
          v_and_b32 v5, 1, v2
          v_lshlrev_b32 v5, 5, v5
          v_lshrrev_b32 v6, 1, v2
          v_lshl_add_u32 v5, v6, 4, v5
          v_lshl_add_u32 v5, v1, 11, v5
          s_lshl_b32 s52, s{sTO}, 17
          s_lshl_b32 s53, s51, 15
          s_add_u32 s52, s52, s53
          s_lshl_b32 s53, s{sCO}, 7
          s_add_u32 s52, s52, s53
          s_lshl_b32 s53, s50, 6
          s_add_u32 s52, s52, s53
          v_add_u32 v10, s52, v5
          s_lshl_b32 s52, s{sWAVE}, 11
          v_lshlrev_b32 v5, 4, v0
          v_add_u32 v11, s52, v5
          v_xor_b32 v12, 0x2000, v11""")

def op_wreads(a, br):
    a(f"v_add_u32 v16, {br*65536}, v8" if br else "v_mov_b32 v16, v8")
    for ct in range(1, 4): a(f"v_xor_b32 v{16+ct}, {ct*32}, v16")
    L = []
    for s in range(8):
        for ct in range(4):
            for jj in range(2):
                L.append(f"ds_read_b64_tr_b16 {vr(WF(s,ct)+2*jj,2)}, v{16+ct} offset:{s*4096 + jj*512}")
    return L

def op_oloads(a, br, sc):
    a(f"s_mov_b32 s50, {OA if br else OB}\ns_mov_b32 s51, {(OA if br else OB)+4096}\ns_mov_b32 s52, {(OA if br else OB)+8192}\ns_mov_b32 s53, {(OA if br else OB)+12288}")
    for s in range(8):
        a(f"buffer_load_dwordx4 {vr(OF(s),4)}, v9, s[{sWS}:{sWS+3}], s{50+s//2} offen offset:{(s%2)*2048} {sc}")

def op_finish(a, br):
    lab = a.newlabel("L_op")
    a(f"""s_cmp_ge_u32 s{sWAVE}, 4
          s_cbranch_scc1 {lab}_hi
          ds_write_b128 v11, {vr(PA(2),4)} offset:{L_RED}
          ds_write_b128 v11, {vr(PA(3),4)} offset:{L_RED+1024}
          s_branch {lab}_j""")
    a.label(f"{lab}_hi")
    a(f"""ds_write_b128 v11, {vr(PA(0),4)} offset:{L_RED}
          ds_write_b128 v11, {vr(PA(1),4)} offset:{L_RED+1024}""")
    for r in range(8): a(f"v_mov_b32 v{PA(0)+r}, v{PA(2)+r}")
    a.label(f"{lab}_j")
    a(f"""s_waitcnt lgkmcnt(0)
          s_barrier
          ds_read_b128 {vr(PA(2),4)}, v12 offset:{L_RED}
          ds_read_b128 {vr(PA(3),4)}, v12 offset:{L_RED+1024}
          s_waitcnt lgkmcnt(0)""")
    for r in range(8): a(f"v_add_f32 v{PA(0)+r}, v{PA(0)+r}, v{PA(2)+r}")
    cvt2(a, 24, PA(0)); cvt2(a, 26, PA(1))
    a(f"""v_permlane16_swap_b32 v24, v26
          v_permlane16_swap_b32 v25, v27
          buffer_store_dwordx4 v[24:27], v10, s[{sOUT}:{sOUT+3}], 0 offen offset:{0 if br else 1024}""")

def op_mfmas(s):
    return [f"v_mfma_f32_16x16x32_bf16 {vr(PA(ct),4)}, {vr(WF(s,ct),4)}, {vr(OF(s),4)}, {vr(PA(ct),4) if s else 0}" for ct in range(4)]

def phase_out_simple(a, sc):
    wo_dma(a)
    op_setup(a)
    a("s_waitcnt vmcnt(0)\ns_barrier")
    stamp(a, 17)
    for br in range(2):
        op_oloads(a, br, sc)
        for l in op_wreads(a, br): a(l)
        a("s_waitcnt lgkmcnt(0)")
        for s in range(8):
            a(f"s_waitcnt vmcnt({7-s})")
            for m in op_mfmas(s): a(m)
        op_finish(a, br)
        if br == 0: a("s_barrier")
        stamp(a, 18+br)
    stamp_flush(a, 16, 24)

HEAD = open("cdna_kernels/" + NAME + ".s.ref").read().split("; Override launch")[0]
def kd(name):
    return f""".amdhsa_kernel {name}
  .amdhsa_next_free_vgpr 256
  .amdhsa_next_free_sgpr 96
  .amdhsa_accum_offset 256
  .amdhsa_group_segment_fixed_size 0
  .amdhsa_kernarg_size 72
  .amdhsa_user_sgpr_count 2
  .amdhsa_user_sgpr_kernarg_segment_ptr 1
  .amdhsa_system_sgpr_workgroup_id_x 1
.end_amdhsa_kernel
"""
def emit(kernels, path):
    out = [HEAD.rstrip()]
    if len(kernels) == 1:
        out.append(f"; @launch grid=(256,1,1) block=(512,1,1) lds={kernels[0][2]}")
    else:
        for n, _, lds in kernels: out.append(f"; @launch kernel={n} grid=(256,1,1) block=(512,1,1) lds={lds}")
    out.append('.amdgcn_target "amdgcn-amd-amdhsa--gfx950"\n.text')
    for n, a, _ in kernels:
        out.append(f".globl {n}\n.p2align 8\n.type {n},@function\n{n}:")
        for l in fix_hazards(a.lines, verbose="-v" in sys.argv):
            out.append(l if l.endswith(":") else "    " + l)
    out.append('.section .rodata,"a"')
    for n, _, _ in kernels:
        out.append(".p2align 6\n" + kd(n))
    open(path, "w").write("\n".join(out))

def build_split(path):
    ks = []
    for n, fn, lds in (("qkv_kernel", phase_qkv, 4*SLOT), ("att_kernel", phase_att, L_WO), (NAME + "_kernel", phase_out_simple, ATT_LDS)):
        a = Asm(); end = "L_end_" + n[:3]
        entry(a, end, {"qkv": 0, "att": 8, "con": 16}[n[:3]]); fn(a, ""); a.label(end); a("s_endpgm")
        ks.append((n, a, lds))
    emit(ks, path)

if __name__ == "__main__":
    build_split("stamp.s" if STAMP else "cdna_kernels/" + NAME + ".s")
```

```python
import sys, struct
from asmlib import *

NAME = "concat_heads__softmax_full_mha__sliding_local_dilated__prompt"
MB = 1 << 20
QF, KF, VF, OA, OB, FL = 0, 2*MB, 4*MB, 6*MB, 8*MB, 10*MB
F_E, F_KV, F_OB, F_OA = FL, FL + 4096, FL + 8192, FL + 12288
WS_BYTES = 11*MB
def f2u(x): return struct.unpack("<I", struct.pack("<f", x))[0]
LOG2E = 1.4426950408889634
CSC = f2u(0.25*LOG2E)
SLOT = 34816; XREG = 10240
OPT = dict(a.split("=") for a in sys.argv[1:] if "=" in a)
def opt(k, d): return type(d)(OPT.get(k, d))
sX, sW, sWS, sOUT = 24, 28, 32, 36
sWAVE = 40
sTB, sHG, sROT = 41, 42, 43
sH, sB = 44, 45
sTO, sCO = 46, 47
sC = 48
sTAG = 49
sW4 = 22
SPIN = 1 << 16
sc = "sc1"

STAMP = "-stamp" in sys.argv
ST = 10*MB + 512*1024
def stamp(a, i):
    if STAMP: a(f"s_memtime s[94:95]\ns_waitcnt lgkmcnt(0)\nv_writelane_b32 v7, s94, {i}")
def rstamp(a, i):
    if STAMP: a(f"s_memrealtime s[94:95]\ns_waitcnt lgkmcnt(0)\nv_writelane_b32 v7, s94, {i}")
def stamp_flush(a):
    if not STAMP: return
    a(f"""s_lshl_b32 s50, s2, 3
          s_add_u32 s50, s50, s{sWAVE}
          s_lshl_b32 s50, s50, 8
          s_add_u32 s50, s50, {ST}
          v_lshlrev_b32 v1, 2, v0
          buffer_store_dword v7, v1, s[{sWS}:{sWS+3}], s50 offen""")

def srd(a, d, p, nbytes):
    a(f"s_mov_b32 s{d}, s{p}\ns_mov_b32 s{d+1}, s{p+1}\ns_mov_b32 s{d+2}, {nbytes}\ns_mov_b32 s{d+3}, 0x20000")

def entry(a):
    a(f"""s_cmp_ge_u32 s2, 256
          s_cbranch_scc1 L_end
          s_load_dwordx16 s[4:19], s[0:1], 0
          s_load_dwordx2 s[20:21], s[0:1], 64""")
    if STAMP: a("s_memtime s[90:91]\ns_memrealtime s[92:93]")
    a(f"""v_lshrrev_b32 v1, 6, v0
          v_and_b32 v0, 63, v0
          v_readfirstlane_b32 s{sWAVE}, v1
          s_and_b32 s50, s2, 7
          s_lshr_b32 s51, s2, 3
          s_lshr_b32 s{sB}, s51, 2
          s_and_b32 s53, s51, 3
          s_lshr_b32 s54, s50, 1
          s_lshl_b32 s54, s54, 3
          s_add_u32 s{sTB}, s54, s{sB}
          s_and_b32 s54, s50, 1
          s_lshl_b32 s54, s54, 2
          s_add_u32 s{sHG}, s54, s53
          s_lshl_b32 s54, s53, 1
          s_add_u32 s{sROT}, s54, s{sB}
          s_and_b32 s{sROT}, s{sROT}, 7
          s_lshl_b32 s54, s50, 2
          s_add_u32 s{sH}, s54, s53
          s_lshr_b32 s55, s51, 3
          s_add_u32 s{sTO}, s54, s55
          s_and_b32 s{sCO}, s51, 7
          s_mov_b32 s{sC}, {CSC:#x}
          s_and_b32 s{sW4}, s{sWAVE}, 3
          v_lshlrev_b32 v14, 4, v0""")

def ws_setup(a):
    srd(a, sWS, 20, WS_BYTES)
    a(f"""s_add_u32 s68, s20, {FL}
          s_addc_u32 s69, s21, 0""")
def epoch_load(a):
    ws_setup(a)
    a(f"s_load_dword s{sTAG}, s[68:69], 0")
def epoch_tag(a):
    a(f"""s_waitcnt lgkmcnt(0)
          s_mul_i32 s{sTAG}, s{sTAG}, 0x9e3779b1
          s_add_u32 s{sTAG}, s{sTAG}, 0x7f4a7c15""")
def flag_store(a, soff):
    a(f"""v_mov_b32 v1, 0
          v_mov_b32 v2, s{sTAG}
          s_mov_b64 exec, 1
          buffer_store_dword v2, v1, s[{sWS}:{sWS+3}], s{soff} offen {sc}
          s_mov_b64 exec, -1""")

ACC = 32
aQ = lambda i: ACC + 4*i
aK = lambda i: ACC + 16 + 4*(i+1)
aV = lambda i: ACC + 36 + 4*(i+1)
F0, F1 = 88, 120
fX = lambda F, i: F + 4*(i+1)
fW = lambda F, seg: F + 20 + 4*seg

def kv_flag_load(a):
    a(f"""s_add_u32 s50, s{sWAVE}, s{sB}
          s_and_b32 s50, s50, 7
          s_lshl_b32 s50, s50, 4
          s_lshl_b32 s51, s{sH}, 7
          s_add_u32 s51, s51, {F_KV - FL}
          s_add_u32 s66, s50, s51
          s_lshl_b32 s50, s{sB}, 2
          s_lshr_b32 s52, s{sWAVE}, 1
          s_add_u32 s50, s50, s52
          s_lshl_b32 s50, s50, 2
          s_add_u32 s67, s50, s51
          s_add_u32 s71, s51, {FL}
          s_load_dwordx4 s[72:75], s[68:69], s66
          s_load_dword s76, s[68:69], s67""")
def vpoll(a, lab, vdst, voff, soff):
    a("s_mov_b32 s70, 0")
    a.label(lab)
    a(f"""buffer_load_dword v{vdst}, v{voff}, s[{sWS}:{sWS+3}], s{soff} offen {sc}
          s_add_u32 s70, s70, 1
          s_cmp_gt_u32 s70, {SPIN}
          s_waitcnt vmcnt(0)
          v_cmp_ne_u32 vcc, s{sTAG}, v{vdst}
          s_cbranch_scc1 {lab}_x
          s_nop 0
          s_cbranch_vccnz {lab}""")
    a.label(lab + "_x")
def kv_flag_wait(a, tag):
    a(f"""s_waitcnt lgkmcnt(0)
          s_xor_b32 s72, s72, s{sTAG}
          s_xor_b32 s73, s73, s{sTAG}
          s_xor_b32 s74, s74, s{sTAG}
          s_xor_b32 s75, s75, s{sTAG}
          s_xor_b32 s76, s76, s{sTAG}
          s_or_b64 s[72:73], s[72:73], s[74:75]
          s_or_b32 s72, s72, s73
          s_mov_b32 s70, 0
          s_or_b32 s72, s72, s76
          s_cbranch_scc0 L_kvok_{tag}
          v_and_b32 v1, 31, v0
          v_lshlrev_b32 v1, 2, v1""")
    vpoll(a, f"L_kvp_{tag}", 2, 1, 71)
    a.label(f"L_kvok_{tag}")
    if STAMP: a("v_writelane_b32 v7, s70, 20")

def loader(a):
    a(f"""v_lshrrev_b32 v1, 3, v0
          v_and_b32 v2, 7, v0
          s_and_b32 s51, s{sW4}, 1
          s_lshl_b32 s52, s51, 2
          v_lshrrev_b32 v3, 1, v1
          v_add_u32 v4, s52, v3
          v_xor_b32 v4, v4, v2
          v_lshlrev_b32 v4, 4, v4
          v_lshl_add_u32 v4, v1, 10, v4
          s_lshl_b32 s53, s{sTB}, 16
          s_lshl_b32 s54, s{sW4}, 13
          s_add_u32 s54, s53, s54
          v_add_u32 v8, s54, v4
          s_lshl_b32 s52, s{sW4}, 1
          v_add_u32 v4, s52, v3
          v_xor_b32 v4, v4, v2
          v_and_b32 v4, 7, v4
          v_lshlrev_b32 v4, 4, v4
          v_lshl_add_u32 v4, v1, 10, v4
          s_max_u32 s53, s53, 16384
          s_sub_u32 s53, s53, 16384
          s_lshl_b32 s54, s{sW4}, 12
          s_add_u32 s54, s53, s54
          v_add_u32 v9, s54, v4
          ; W rows
          v_and_b32 v4, 1, v3
          s_lshl_b32 s52, s51, 1
          v_add_u32 v4, s52, v4
          v_lshlrev_b32 v4, 1, v4
          v_xor_b32 v4, v4, v2
          v_lshlrev_b32 v4, 4, v4
          v_mul_u32_u24 v5, 3072, v1
          v_add_u32 v4, v4, v5
          s_mul_i32 s53, s{sW4}, 24576
          s_lshl_b32 s54, s{sHG}, 7
          s_add_u32 s54, s53, s54
          v_add_u32 v10, s54, v4
          s_lshl_b32 s56, s{sW4}, 10
          s_add_u32 s56, s56, 2048
          s_lshl_b32 s57, s{sW4}, 9
          s_mul_i32 s58, s{sW4}, 3072
          s_add_u32 s58, s58, {XREG}
          s_mov_b32 s59, 0
          s_mov_b32 s60, 0
          s_mov_b32 s61, s{sROT}
          s_mov_b32 s{sX+2}, {2*MB}
          s_mov_b32 s{sX+3}, 0x20000
          s_mov_b32 s{sW+2}, {512*3072}
          s_mov_b32 s{sW+3}, 0x20000
          s_waitcnt lgkmcnt(0)
          s_mov_b64 s[{sX}:{sX+1}], s[4:5]
          s_mov_b64 s[{sW}:{sW+1}], s[6:7]""")
    if STAMP: a("v_writelane_b32 v7, s90, 0\nv_writelane_b32 v7, s92, 62")
    a.label("L_ld_loop")
    a(f"""s_lshl_b32 s62, s61, 7
          s_mul_i32 s63, s61, {64*3072}
          s_add_u32 s64, s62, 32768
          s_add_u32 s65, s63, {32*3072}
          s_add_u32 m0, s60, s56
          s_cmp_lt_u32 s59, 3
          s_cbranch_scc1 L_ld_go
          s_cmp_lt_u32 s59, 9
          s_cbranch_scc1 L_ld_w16
          s_cmp_eq_u32 s59, 9
          s_cbranch_scc1 L_ld_w17
          s_waitcnt vmcnt(18)
          s_branch L_ld_bar""")
    a.label("L_ld_w17")
    a("s_waitcnt vmcnt(17)\ns_branch L_ld_bar")
    a.label("L_ld_w16")
    a("s_waitcnt vmcnt(16)")
    a.label("L_ld_bar")
    a("s_barrier")
    a.label("L_ld_go")
    a(f"""buffer_load_dwordx4 v8, s[{sX}:{sX+3}], s62 offen lds
          s_add_u32 m0, m0, 4096""")
    if STAMP: a("s_memtime s[94:95]")
    a(f"""buffer_load_dwordx4 v8, s[{sX}:{sX+3}], s64 offen lds
          s_add_u32 m0, s60, s58
          s_cmp_lt_u32 s59, 8
          buffer_load_dwordx4 v10, s[{sW}:{sW+3}], s63 offen lds
          buffer_load_dwordx4 v10, s[{sW}:{sW+3}], s63 offen offset:1024 lds
          buffer_load_dwordx4 v10, s[{sW}:{sW+3}], s63 offen offset:2048 lds
          s_cbranch_scc1 L_ld_nohalo
          s_add_u32 m0, s60, s57
          s_mov_b32 exec_hi, 0
          buffer_load_dwordx4 v9, s[{sX}:{sX+3}], s62 offen lds
          s_mov_b32 exec_hi, -1""")
    a.label("L_ld_nohalo")
    if STAMP: a("s_add_u32 m0, s59, 32\ns_waitcnt lgkmcnt(0)\nv_writelane_b32 v7, s94, m0")
    a(f"""s_add_u32 s66, s60, s58
          s_add_u32 m0, s66, 12288
          s_add_u32 s61, s61, 1
          s_and_b32 s61, s61, 7
          s_add_u32 s60, s60, {SLOT}
          s_cmp_eq_u32 s60, {4*SLOT}
          s_cselect_b32 s60, 0, s60
          s_add_u32 s59, s59, 1
          buffer_load_dwordx4 v10, s[{sW}:{sW+3}], s65 offen lds
          buffer_load_dwordx4 v10, s[{sW}:{sW+3}], s65 offen offset:1024 lds
          buffer_load_dwordx4 v10, s[{sW}:{sW+3}], s65 offen offset:2048 lds
          s_cmp_eq_u32 s59, 3
          s_cbranch_scc0 L_ld_not3""")
    epoch_load(a)
    v_const_init(a, range(192, 256))
    epoch_tag(a)
    a.label("L_ld_not3")
    a(f"""s_cmp_eq_u32 s59, 8
          s_cbranch_scc0 L_ld_noswitch
          s_mov_b64 s[{sX}:{sX+1}], s[10:11]
          s_mov_b64 s[{sW}:{sW+1}], s[12:13]""")
    a.label("L_ld_noswitch")
    a(f"""s_cmp_lt_u32 s59, 16
          s_cbranch_scc1 L_ld_loop""")
    ws_setup(a)
    a("s_waitcnt vmcnt(18)\ns_barrier")
    stamp(a, 48)
    a("s_waitcnt vmcnt(9)\ns_barrier")
    stamp(a, 49)
    kv_flag_load(a)
    a("s_waitcnt vmcnt(0)\ns_barrier")
    kv_flag_wait(a, "l")
    stamp(a, 50)
    att_loads(a)

def gemm_mfmas(F, halo):
    L = []
    for i in range(-1 if halo else 0, 4):
        if i >= 0: L.append(f"v_mfma_f32_16x16x32_bf16 {vr(aQ(i),4)}, {vr(fW(F,0),4)}, {vr(fX(F,i),4)}, {vr(aQ(i),4)}")
        L.append(f"v_mfma_f32_16x16x32_bf16 {vr(aK(i),4)}, {vr(fW(F,1),4)}, {vr(fX(F,i),4)}, {vr(aK(i),4)}")
        L.append(f"v_mfma_f32_16x16x32_bf16 {vr(aV(i),4)}, {vr(fX(F,i),4)}, {vr(fW(F,2),4)}, {vr(aV(i),4)}")
    return L
def gemm_reads(F, s, halo):
    L = []
    for seg in range(3):
        for jj in range(2):
            L.append(f"ds_read_b64_tr_b16 {vr(fW(F,seg)+2*jj,2)}, v13 offset:{XREG + s*12288 + seg*1024 + jj*512}")
    for i in range(-1 if halo else 0, 4):
        L.append(f"ds_read_b128 {vr(fX(F,i),4)}, v{11+s} offset:{(i+1)*2048}")
    return L
def interleave(a, M, R, per=2):
    R = list(R)
    for m in M:
        a(m)
        for _ in range(per):
            if R: a(R.pop(0))
    for r in R: a(r)

def gemm_init(a, halo):
    for r in range(ACC, ACC+56): a(f"v_mov_b32 v{r}, 0")
    rng = range(F1, F1+32) if not halo else list(range(F1, F1+4)) + list(range(F1+20, F1+32))
    for r in rng: a(f"v_mov_b32 v{r}, 0")
def gemm_loop(a, halo, tag, before_tail=None):
    a("s_mov_b32 s59, 0")
    a.label(f"L_g_{tag}")
    a(f"""v_add_u32 v11, s60, v8
          v_add_u32 v12, s60, v9
          v_add_u32 v13, s60, v10
          s_add_u32 s60, s60, {SLOT}
          s_cmp_eq_u32 s60, {4*SLOT}
          s_cselect_b32 s60, 0, s60
          s_add_u32 s59, s59, 1
          s_barrier""")
    interleave(a, gemm_mfmas(F1, halo), gemm_reads(F0, 0, halo))
    a("s_waitcnt lgkmcnt(0)")
    interleave(a, gemm_mfmas(F0, halo), gemm_reads(F1, 1, halo))
    a(f"""s_cmp_lt_u32 s59, 8
          s_waitcnt lgkmcnt(0)
          s_cbranch_scc1 L_g_{tag}""")
    if before_tail: before_tail(a)
    for m in gemm_mfmas(F1, halo): a(m)

def cvt2(a, d, s):
    a(f"v_cvt_pk_bf16_f32 v{d}, v{s}, v{s+1}\nv_cvt_pk_bf16_f32 v{d+1}, v{s+2}, v{s+3}")

def consumer(a):
    a("s_waitcnt lgkmcnt(0)")
    if STAMP: a("v_writelane_b32 v7, s90, 0\nv_writelane_b32 v7, s92, 62")
    epoch_load(a)
    local_masks(a)
    a(f"""v_and_b32 v1, 15, v0
          v_lshrrev_b32 v2, 4, v0
          v_lshrrev_b32 v3, 1, v1
          v_xor_b32 v3, v3, v2
          v_lshlrev_b32 v3, 4, v3
          v_lshl_add_u32 v8, v1, 7, v3
          v_xor_b32 v9, 64, v8
          v_bfe_u32 v4, v0, 2, 2
          v_lshrrev_b32 v5, 1, v4
          v_and_b32 v6, 1, v2
          v_lshl_add_u32 v5, v6, 1, v5
          v_xor_b32 v5, s{sW4}, v5
          v_lshlrev_b32 v5, 5, v5
          v_lshl_add_u32 v5, v4, 7, v5
          v_and_b32 v6, 3, v0
          v_lshl_add_u32 v5, v6, 3, v5
          v_mul_u32_u24 v6, 3072, v2
          v_add_u32 v10, v5, v6
          s_mov_b32 s60, 0""")
    v_const_init(a, range(192, 256))
    gemm_init(a, False)
    epoch_tag(a)
    stamp(a, 1)
    gemm_loop(a, False, "A")
    stamp(a, 2)
    a(f"""s_lshl_b32 s50, s{sHG}, 2
          s_add_u32 s50, s50, s{sW4}
          s_lshl_b32 s51, s50, 16
          s_lshl_b32 s52, s{sTB}, 11
          s_add_u32 s51, s51, s52
          s_add_u32 s52, s51, {KF}
          s_add_u32 s53, s51, {VF}
          s_lshl_b32 s54, s50, 7
          s_lshl_b32 s55, s{sTB}, 2
          s_add_u32 s54, s54, s55
          s_add_u32 s54, s54, {F_KV}""")
    P = F0
    for (acc, so, scale, base) in ((aK, 52, False, P), (aV, 53, False, P+8), (aQ, 51, True, P+16)):
        if scale:
            for r in range(aQ(0), aQ(0)+16): a(f"v_mul_f32 v{r}, s{sC}, v{r}")
        for i in range(4): cvt2(a, base+2*i, acc(i))
        for pr in range(2):
            b = base + 4*pr
            a(f"v_permlane16_swap_b32 v{b}, v{b+2}\nv_permlane16_swap_b32 v{b+1}, v{b+3}")
        for pr in range(2):
            a(f"buffer_store_dwordx4 {vr(base+4*pr,4)}, v14, s[{sWS}:{sWS+3}], s{so} offen offset:{pr*1024} {sc}")
    gemm_init(a, True)
    stamp(a, 3)
    a("s_waitcnt vmcnt(0)")
    flag_store(a, 54)
    stamp(a, 4)
    gemm_loop(a, True, "B", kv_flag_load)
    stamp(a, 5)
    local_attn(a)
    stamp(a, 6)

def local_attn(a):
    pQ = lambda i: 88 + 2*i
    pK = lambda i: 96 + 2*(i+1)
    pV = lambda i: 106 + 2*(i+1)
    Sx = lambda i: 120 + 8*i
    for i in range(-1, 4): cvt2(a, pK(i), aK(i))
    for i in range(4): cvt2(a, pQ(i), aQ(i))
    for i in range(4):
        a(f"v_mfma_f32_16x16x16_bf16 {vr(Sx(i),4)}, {vr(pK(i-1),2)}, {vr(pQ(i),2)}, {vr(24 if i==0 else 20,4)}")
        a(f"v_mfma_f32_16x16x16_bf16 {vr(Sx(i)+4,4)}, {vr(pK(i),2)}, {vr(pQ(i),2)}, v[16:19]")
    for i in range(-1, 4): cvt2(a, pV(i), aV(i))
    M = lambda i: 32 + i
    Tm = lambda i: 36 + i
    for i in range(4):
        s = Sx(i)
        a(f"v_max3_f32 v{M(i)}, v{s}, v{s+1}, v{s+2}\nv_max3_f32 v{Tm(i)}, v{s+3}, v{s+4}, v{s+5}")
    for i in range(4):
        s = Sx(i)
        a(f"v_max3_f32 v{M(i)}, v{M(i)}, v{s+6}, v{s+7}")
    for i in range(4): a(f"v_max_f32 v{M(i)}, v{M(i)}, v{Tm(i)}")
    for sw in ("v_permlane32_swap_b32", "v_permlane16_swap_b32"):
        for i in range(4): a(f"v_mov_b32 v{Tm(i)}, v{M(i)}")
        for i in range(4): a(f"{sw} v{M(i)}, v{Tm(i)}")
        for i in range(4): a(f"v_max_f32 v{M(i)}, v{M(i)}, v{Tm(i)}")
    for i in range(4): a(f"v_mul_f32 v{M(i)}, s{sC}, v{M(i)}")
    kv_flag_wait(a, "c")
    att_loads(a)
    pP = lambda i: 40 + 4*i
    oO = lambda i: 56 + 4*i
    oL = lambda i: 72 + 4*i
    for i in range(4):
        s = Sx(i)
        for r in range(8): a(f"v_fma_f32 v{s+r}, v{s+r}, s{sC}, -v{M(i)}")
        for r in range(8): a(f"v_exp_f32 v{s+r}, v{s+r}")
        cvt2(a, pP(i), s); cvt2(a, pP(i)+2, s+4)
        if i > 0:
            a(f"v_mfma_f32_16x16x32_bf16 {vr(oL(i-1),4)}, v[28:31], {vr(pP(i-1),4)}, 0")
            a(f"v_mfma_f32_16x16x32_bf16 {vr(oO(i-1),4)}, {vr(pV(i-2),4)}, {vr(pP(i-1),4)}, 0")
    a(f"v_mfma_f32_16x16x32_bf16 {vr(oL(3),4)}, v[28:31], {vr(pP(3),4)}, 0")
    a(f"v_mfma_f32_16x16x32_bf16 {vr(oO(3),4)}, {vr(pV(2),4)}, {vr(pP(3),4)}, 0")
    a(f"""s_lshl_b32 s50, s{sHG}, 2
          s_add_u32 s50, s50, s{sW4}
          s_lshl_b32 s52, s50, 2
          s_lshl_b32 s50, s50, 10
          s_lshl_b32 s51, s{sTB}, 16
          s_add_u32 s50, s50, s51
          s_add_u32 s50, s50, {OB}
          s_add_u32 s51, s50, 32768
          s_lshl_b32 s53, s{sTB}, 7
          s_add_u32 s52, s52, s53
          s_add_u32 s23, s52, {F_OB}""")
    for i in range(4):
        a(f"v_rcp_f32 v{oL(i)}, v{oL(i)}")
    for i in range(4):
        for r in range(4): a(f"v_mul_f32 v{oO(i)+r}, v{oL(i)}, v{oO(i)+r}")
        cvt2(a, 128+2*i, oO(i))
    for pr in range(2):
        b = 128 + 4*pr
        a(f"v_permlane16_swap_b32 v{b}, v{b+2}\nv_permlane16_swap_b32 v{b+1}, v{b+3}")

def local_masks(a):
    NEG = f2u(-1e30)
    a(f"""v_and_b32 v1, 15, v0
          v_lshrrev_b32 v2, 4, v0
          v_lshlrev_b32 v2, 2, v2
          v_sub_u32 v1, v1, v2
          v_mov_b32 v3, {NEG:#x}
          s_cmp_eq_u32 s{sTB}, 0
          s_cselect_b64 s[52:53], -1, 0""")
    for r in range(4):
        a(f"""v_subrev_u32 v4, {r}, v1
              v_and_b32 v5, -15, v4
              v_cmp_eq_u32 vcc, 0, v5
              v_add_u32 v4, 16, v4
              v_and_b32 v5, -15, v4
              v_cndmask_b32 v{16+r}, v3, 0, vcc
              v_cmp_eq_u32 vcc, 0, v5
              v_mov_b32 v{28+r}, 0x3f803f80
              v_cndmask_b32 v{20+r}, v3, 0, vcc
              v_cndmask_b32 v{24+r}, v{20+r}, v3, s[52:53]""")

S0, S1, O0, O1, CC = 32, 48, 64, 80, 96
Qr = (116, 112); NM = (120, 122); AC = 124; ZZ = 126; IDX = 31
KR = lambda t: 160 + 4*t
VR = lambda t, blk: 192 + 8*t + 4*blk
L_XA, L_XB, L_XL = 0, 8192, 16384
L_M = L_XL + 4
L_Q = 24576
L_WO = 32768
LDS_BYTES = L_WO + 131072

def v_const_init(a, regs):
    a(f"""v_and_b32 v1, 27, v0
          v_cmp_eq_u32 vcc, 16, v1
          v_mov_b32 v2, 0x3f803f80
          v_cndmask_b32 v2, 0, v2, vcc""")
    for r in regs: a(f"v_mov_b32 v{r}, v2")

def att_loads(a):
    a(f"""s_add_u32 s72, s{sWAVE}, s{sB}
          s_and_b32 s72, s72, 7
          s_lshl_b32 s72, s72, 13
          s_lshl_b32 s77, s{sH}, 16
          s_add_u32 s72, s72, s77
          s_add_u32 s74, s72, {VF}
          s_add_u32 s72, s72, {KF}
          s_add_u32 s73, s72, 4096
          s_add_u32 s75, s74, 4096
          s_lshl_b32 s76, s{sB}, 3
          s_add_u32 s76, s76, s{sWAVE}
          s_lshl_b32 s76, s76, 10
          s_add_u32 s76, s76, s77
          v_and_b32 v15, 0x2f0, v14
          s_mov_b32 s58, 0xffff
          s_mov_b32 s59, 0xffff
          buffer_load_dwordx4 {vr(Qr[0],4)}, v14, s[{sWS}:{sWS+3}], s76 offen {sc}""")
    for t in range(8):
        a(f"buffer_load_dwordx4 {vr(KR(t),4)}, v14, s[{sWS}:{sWS+3}], s{72+t//4} offen offset:{(t%4)*1024} {sc}")
        a("s_mov_b64 exec, s[58:59]")
        for blk in range(2):
            a(f"buffer_load_dwordx4 {vr(VR(t,blk),4)}, v15, s[{sWS}:{sWS+3}], s{74+t//4} offen offset:{(t%4)*1024+blk*256} {sc}")
        a("s_mov_b64 exec, -1")

def max16(a, S, d, t):
    a(f"""v_max3_f32 v{d}, v{S}, v{S+1}, v{S+2}
          v_max3_f32 v{t}, v{S+3}, v{S+4}, v{S+5}
          v_max3_f32 v{d}, v{d}, v{S+6}, v{S+7}
          v_max3_f32 v{t}, v{t}, v{S+8}, v{S+9}
          v_max3_f32 v{d}, v{d}, v{S+10}, v{S+11}
          v_max3_f32 v{t}, v{t}, v{S+12}, v{S+13}
          v_max3_f32 v{d}, v{d}, v{S+14}, v{S+15}
          v_max_f32 v{d}, v{d}, v{t}""")

def qk(S, t, q): return f"v_mfma_f32_32x32x16_bf16 {vr(S,16)}, {vr(KR(t),4)}, {vr(q,4)}, {vr(CC,16)}"
def pv(O, t, blk, S): return f"v_smfmac_f32_32x32x32_bf16 {vr(O,16)}, {vr(VR(t,blk),4)}, {vr(S+8*blk,8)}, v{IDX}"
def zero16(O): return f"v_mfma_f32_32x32x8_bf16 {vr(O,16)}, {vr(ZZ,2)}, {vr(ZZ,2)}, 0"
def cset(p): return f"v_mfma_f32_32x32x8_bf16 {vr(CC,16)}, {vr(AC,2)}, {vr(NM[p],2)}, 0"

def att_side(a):
    a(f"""s_cmp_ge_u32 s61, 2
          s_cbranch_scc1 L_side2
          s_cmp_lt_u32 s{sWAVE}, 4
          s_cbranch_scc1 L_side_dma
          s_cmp_eq_u32 s61, 0
          s_cbranch_scc0 L_side_flag
          buffer_store_dwordx4 v[128:131], v14, s[{sWS}:{sWS+3}], s50 offen {sc}
          buffer_store_dwordx4 v[132:135], v14, s[{sWS}:{sWS+3}], s51 offen {sc}
          s_branch L_side_dma""")
    a.label("L_side_flag")
    flag_store(a, 23)
    a.label("L_side_dma")
    a("s_mov_b32 s52, 0")
    for i in range(8):
        a(f"buffer_load_dwordx4 v13, s[{sW}:{sW+3}], s52 offen lds")
        a(f"s_add_u32 m0, m0, 8192\ns_add_u32 s52, s52, 65536")
    a(f"""s_mov_b64 s[{sW}:{sW+1}], s[8:9]
          s_branch L_side_end""")
    a.label("L_side2")
    a(f"""s_cmp_eq_u32 s61, 2
          s_cbranch_scc1 L_side_poll
          s_mov_b32 s70, 0""")
    a.label("L_side_chk")
    a(f"""v_cmp_ne_u32 vcc, s{sTAG}, v19
          s_nop 1
          s_cbranch_vccz L_side_ok
          s_add_u32 s70, s70, 1
          s_cmp_gt_u32 s70, {SPIN}
          s_cbranch_scc1 L_side_ok
          buffer_load_dword v19, v18, s[{sWS}:{sWS+3}], s64 offen {sc}
          s_waitcnt vmcnt(0)
          s_branch L_side_chk""")
    a.label("L_side_ok")
    op_oloads(a, 0)
    a("s_branch L_side_end")
    a.label("L_side_poll")
    a(f"buffer_load_dword v19, v18, s[{sWS}:{sWS+3}], s64 offen {sc}")
    a.label("L_side_end")

def att_body(a, p):
    O, Op = (O0, O1) if p == 0 else (O1, O0)
    TB_ = opt("tbar", 5)
    PR = opt("prio", 1)
    for t in range(8):
        Sa, Sb = (S0, S1) if t % 2 == 0 else (S1, S0)
        extra = {}
        def ex(i, s): extra.setdefault(i, []).append(s)
        ex(1, pv(Op, 7, 1, Sb) if t == 0 else pv(O, t-1, 1, Sb))
        if p == 0: ex(4, f"s_waitcnt vmcnt({max(0, 20-3*t)})")
        ex(4, qk(Sb, t+1, Qr[p]) if t < 7 else qk(Sb, 0, Qr[1-p]))
        ex(10, pv(O, t, 0, Sa))
        if t == 1:
            ex(0, f"ds_write_b128 v16, {vr(Op,4)} offset:{L_XA}")
            ex(2, f"ds_write_b128 v16, {vr(Op+4,4)} offset:{L_XB}")
            ex(3, f"ds_write_b32 v16, v{Op+8} offset:{L_XL}")
            ex(7, "s_add_u32 s60, s60, " + ("2048" if p == 0 else "s63"))
            ex(8, "s_and_b32 s60, s60, 0x1fff")
            ex(9, "v_add_u32 v16, s60, v14")
            ex(11, "s_add_u32 s62, s62, 1024")
            ex(12, "s_and_b32 s62, s62, 0x1fff")
            ex(13, "v_add_u32 v17, s62, v14")
        if t == TB_:
            ex(7, "s_waitcnt lgkmcnt(0)")
            ex(7, "s_barrier")
            if PR: ex(7, "s_setprio 3")
            ex(7, f"ds_read_b32 v{NM[1-p]}, v17 offset:{L_M}")
            ex(8, f"ds_read_b128 {vr(Qr[1-p],4)}, v17 offset:{L_Q}")
            ex(9, f"ds_read_b128 {vr(Op,4)}, v16 offset:{L_XA}")
            ex(11, f"ds_read_b128 {vr(Op+4,4)}, v16 offset:{L_XB}")
            ex(12, f"ds_read_b32 v{Op+8}, v16 offset:{L_XL}")
        if PR:
            if t == (TB_+4) % 8: ex(7, "s_setprio 2")
            if t == (TB_+7) % 8: ex(2, "s_setprio 1")
            if t == TB_: ex(0, "s_setprio 0")
        if t == 6:
            ex(6, "s_waitcnt lgkmcnt(0)")
            ex(7, cset(1-p))
        for i in range(16):
            a(f"v_exp_f32 v{Sa+i}, v{Sa+i}")
            for s in extra.get(i, []): a(s)
            if p == 1 and t == 0 and i == 7: att_side(a)

def att_fallback(a):
    a(f"""s_lshl_b32 s51, s{sH}, 16
          s_add_u32 s52, s51, {KF}
          s_add_u32 s54, s51, {VF}
          s_add_u32 s55, s52, 65536
          s_lshl_b32 s53, s62, 10
          v_add_u32 v17, s53, v14
          ds_read_b128 {vr(Qr[0],4)}, v17 offset:{L_Q}
          v_mov_b32 v20, 0xff800000
          s_mov_b32 s53, s52""")
    a.label("L_fb1")
    a(f"""buffer_load_dwordx4 {vr(KR(0),4)}, v14, s[{sWS}:{sWS+3}], s53 offen sc1
          s_add_u32 s53, s53, 1024
          s_waitcnt vmcnt(0) lgkmcnt(0)
          v_mfma_f32_32x32x16_bf16 {vr(S0,16)}, {vr(KR(0),4)}, {vr(Qr[0],4)}, 0""")
    max16(a, S0, 21, 22)
    a(f"""v_max_f32 v20, v20, v21
          s_cmp_lt_u32 s53, s55
          s_cbranch_scc1 L_fb1
          v_mov_b32 v21, v20
          v_permlane32_swap_b32 v20, v21
          v_max_f32 v20, v20, v21""")
    for r in range(16): a(f"v_sub_f32 v{CC+r}, 0, v20\nv_mov_b32 v{O0+r}, 0")
    a.label("L_fb2")
    a(f"""buffer_load_dwordx4 {vr(KR(0),4)}, v14, s[{sWS}:{sWS+3}], s52 offen sc1
          s_mov_b64 exec, s[58:59]
          buffer_load_dwordx4 {vr(VR(0,0),4)}, v15, s[{sWS}:{sWS+3}], s54 offen sc1
          buffer_load_dwordx4 {vr(VR(0,1),4)}, v15, s[{sWS}:{sWS+3}], s54 offen offset:256 sc1
          s_mov_b64 exec, -1
          s_add_u32 s52, s52, 1024
          s_add_u32 s54, s54, 1024
          s_waitcnt vmcnt(0)""")
    a(qk(S0, 0, Qr[0]))
    for i in range(16): a(f"v_exp_f32 v{S0+i}, v{S0+i}")
    a(pv(O0, 0, 0, S0)); a(pv(O0, 0, 1, S0))
    a(f"""s_cmp_lt_u32 s52, s55
          s_nop 7
          s_nop 7
          s_cbranch_scc1 L_fb2
          s_branch L_att_ok""")

def phase_att(a):
    wo_setup(a)
    op_setup(a)
    a(f"""v_mov_b32 v{IDX}, 0xdddd
          v_mov_b32 v{ZZ}, 0
          v_mov_b32 v{ZZ+1}, 0
          v_mov_b32 v{NM[0]+1}, 0
          v_mov_b32 v{NM[1]+1}, 0
          v_mov_b32 v{AC+1}, 0
          v_cmp_gt_u32 vcc, 32, v0
          v_mov_b32 v2, 0x3f80
          s_lshl_b32 s60, s{sWAVE}, 10
          v_cndmask_b32 v{AC}, 0, v2, vcc
          v_add_u32 v16, s60, v14""")
    a(zero16(O0)); a(zero16(O1)); a(zero16(S1))
    a(f"""s_mov_b32 s62, s60
          s_waitcnt vmcnt(23)""")
    stamp(a, 8)
    a(f"""v_mfma_f32_32x32x16_bf16 {vr(S0,16)}, {vr(KR(0),4)}, {vr(Qr[0],4)}, 0
          ds_write_b128 v16, {vr(Qr[0],4)} offset:{L_Q}""")
    max16(a, S0, 20, 21)
    a(f"""v_mov_b32 v21, v20
          v_permlane32_swap_b32 v20, v21
          v_max_f32 v20, v20, v21
          v_cvt_pk_bf16_f32 v{NM[0]}, -v20, 0
          ds_write_b32 v16, v{NM[0]} offset:{L_M}""")
    a(cset(0))
    a("s_mov_b32 s61, 0\ns_mov_b32 s63, 2048")
    a(qk(S0, 0, Qr[0]))
    a("s_nop 11")
    stamp(a, 9)
    a(".p2align 3")
    a.label("L_att")
    att_body(a, 0)
    if STAMP: a("s_mov_b32 s89, m0\ns_add_u32 m0, s61, 24"); stamp(a, "m0"); a("s_mov_b32 m0, s89")
    att_body(a, 1)
    a(f"""s_add_u32 s61, s61, 1
          s_cmp_eq_u32 s61, 3
          s_cselect_b32 s63, 1024, s63
          s_cmp_lt_u32 s61, 4
          s_cbranch_scc1 L_att""")
    a(pv(O1, 7, 1, S1))
    stamp(a, 10)
    a(f"""s_add_u32 s62, s{sWAVE}, 7
          s_and_b32 s62, s62, 7
          s_mov_b32 s50, {f2u(2.0**-60):#x}
          s_mov_b32 s51, {f2u(2.0**100):#x}
          s_lshl_b32 s56, s{sB}, 3
          s_add_u32 s56, s56, s62
          s_lshl_b32 s57, s56, 7
          s_lshl_b32 s56, s56, 15
          s_lshl_b32 s52, s{sH}, 10
          s_add_u32 s56, s56, s52
          s_add_u32 s56, s56, {OA}
          s_lshl_b32 s52, s{sH}, 2
          s_add_u32 s57, s57, s52
          s_add_u32 s57, s57, {F_OA}""")
    for r in (8, 0, 1, 2, 3, 4, 5, 6, 7): a(f"v_add_f32 v{O0+r}, v{O0+r}, v{O1+r}")
    a(f"""v_add_f32 v20, abs(v{O0}), abs(v{O0+1})
          v_add_f32 v21, abs(v{O0+2}), abs(v{O0+3})
          v_add_f32 v22, abs(v{O0+4}), abs(v{O0+5})
          v_add_f32 v23, abs(v{O0+6}), abs(v{O0+7})
          v_add_f32 v20, v20, v21
          v_add_f32 v22, v22, v23
          v_cmp_lt_f32 s[52:53], s50, v{O0+8}
          v_add_f32 v20, v20, v{O0+8}
          v_add_f32 v20, v20, v22
          v_cmp_gt_f32 vcc, s51, v20
          s_and_b64 vcc, vcc, s[52:53]
          s_cmp_eq_u64 vcc, -1
          s_cbranch_scc0 L_fallback""")
    a.label("L_att_ok")
    a(f"v_rcp_f32 v20, v{O0+8}")
    for r in range(8): a(f"v_mul_f32 v{O0+r}, v20, v{O0+r}")
    cvt2(a, 24, O0); cvt2(a, 26, O0+4)
    a(f"""v_permlane32_swap_b32 v24, v26
          v_permlane32_swap_b32 v25, v27
          buffer_store_dwordx4 v[24:27], v14, s[{sWS}:{sWS+3}], s56 offen {sc}""")
    stamp(a, 11)

def wo_setup(a):
    a(f"""v_lshrrev_b32 v1, 3, v0
          v_and_b32 v2, 7, v0
          v_bfe_u32 v3, v1, 1, 1
          s_and_b32 s52, s{sWAVE}, 1
          s_lshl_b32 s52, s52, 1
          v_add_u32 v3, s52, v3
          v_lshlrev_b32 v3, 1, v3
          v_xor_b32 v3, v3, v2
          v_lshlrev_b32 v3, 4, v3
          v_lshl_add_u32 v3, v1, 10, v3
          s_lshl_b32 s52, s{sWAVE}, 13
          s_lshl_b32 s53, s{sCO}, 7
          s_add_u32 s52, s52, s53
          v_add_u32 v13, s52, v3
          s_lshl_b32 s52, s{sWAVE}, 10
          s_add_u32 m0, s52, {L_WO}""")
    srd(a, sW, 14, 512*1024)

def WF(s, ct):
    i = 4*s + ct
    return 160 + 4*i if i < 24 else 32 + 4*(i-24)
OF = lambda s: 128 + 4*s
PA = lambda ct: 96 + 4*ct
def op_setup(a):
    srd(a, sOUT, 16, 2048*2048)
    a(f"""v_lshrrev_b32 v2, 4, v0
          v_bfe_u32 v4, v0, 2, 2
          v_lshrrev_b32 v5, 1, v4
          v_and_b32 v6, 1, v2
          v_lshl_add_u32 v5, v6, 1, v5
          v_lshlrev_b32 v5, 5, v5
          v_lshl_add_u32 v5, v4, 7, v5
          v_and_b32 v6, 3, v0
          v_lshl_add_u32 v5, v6, 3, v5
          v_lshl_add_u32 v5, v2, 10, v5
          s_lshr_b32 s54, s{sWAVE}, 2
          s_lshl_b32 s52, s54, 15
          s_add_u32 s52, s52, {L_WO}
          v_add_u32 v8, s52, v5
          v_and_b32 v1, 15, v0
          v_lshlrev_b32 v5, 4, v1
          v_lshl_add_u32 v5, v2, 9, v5
          s_lshl_b32 s52, s{sTO}, 1
          s_lshr_b32 s53, s{sW4}, 1
          s_add_u32 s55, s52, s53
          s_lshl_b32 s52, s55, 15
          s_and_b32 s53, s{sW4}, 1
          s_lshl_b32 s53, s53, 8
          s_add_u32 s52, s52, s53
          s_lshl_b32 s53, s54, 14
          s_add_u32 s52, s52, s53
          v_add_u32 v9, s52, v5
          v_and_b32 v5, 1, v2
          v_lshlrev_b32 v5, 5, v5
          v_lshrrev_b32 v6, 1, v2
          v_lshl_add_u32 v5, v6, 4, v5
          v_lshl_add_u32 v5, v1, 11, v5
          s_lshl_b32 s52, s{sTO}, 17
          s_lshl_b32 s53, s{sW4}, 15
          s_add_u32 s52, s52, s53
          s_lshl_b32 s53, s{sCO}, 7
          s_add_u32 s52, s52, s53
          s_lshl_b32 s53, s54, 6
          s_add_u32 s52, s52, s53
          v_add_u32 v10, s52, v5
          v_lshlrev_b32 v18, 2, v1
          s_lshl_b32 s64, s{sTO}, 7
          s_add_u32 s64, s64, s53
          s_add_u32 s64, s64, {F_OB}
          s_lshl_b32 s65, s55, 7
          s_add_u32 s65, s65, s53
          s_add_u32 s65, s65, {F_OA}""")

def op_waddr(a, br):
    a(f"v_add_u32 v20, {br*65536}, v8" if br else "v_mov_b32 v20, v8")
    for ct in range(1, 4): a(f"v_xor_b32 v{20+ct}, {ct*32}, v20")
def op_wreads(s):
    return [f"ds_read_b64_tr_b16 {vr(WF(s,ct)+2*jj,2)}, v{20+ct} offset:{s*4096 + jj*512}" for ct in range(4) for jj in range(2)]

def op_oloads(a, br):
    b = OA if br else OB
    a(f"s_mov_b32 s52, {b}\ns_mov_b32 s53, {b+4096}\ns_mov_b32 s54, {b+8192}\ns_mov_b32 s55, {b+12288}")
    for s in range(8):
        a(f"buffer_load_dwordx4 {vr(OF(s),4)}, v9, s[{sWS}:{sWS+3}], s{52+s//2} offen offset:{(s%2)*2048} {sc}")

def op_finish(a, br, mid=None):
    wr, rd = (16, 17) if br == 0 else (17, 16)
    lab = a.newlabel("L_op")
    a(f"""s_cmp_ge_u32 s{sWAVE}, 4
          s_cbranch_scc1 {lab}_hi
          ds_write_b128 v{wr}, {vr(PA(2),4)} offset:{L_XA}
          ds_write_b128 v{wr}, {vr(PA(3),4)} offset:{L_XB}
          s_branch {lab}_j""")
    a.label(f"{lab}_hi")
    a(f"""ds_write_b128 v{wr}, {vr(PA(0),4)} offset:{L_XA}
          ds_write_b128 v{wr}, {vr(PA(1),4)} offset:{L_XB}""")
    for r in range(8): a(f"v_mov_b32 v{PA(0)+r}, v{PA(2)+r}")
    a.label(f"{lab}_j")
    if mid: mid(a)
    a(f"""s_waitcnt lgkmcnt(0)
          s_barrier
          ds_read_b128 {vr(PA(2),4)}, v{rd} offset:{L_XA}
          ds_read_b128 {vr(PA(3),4)}, v{rd} offset:{L_XB}
          s_waitcnt lgkmcnt(0)""")
    for r in range(8): a(f"v_add_f32 v{PA(0)+r}, v{PA(0)+r}, v{PA(2)+r}")
    cvt2(a, 24, PA(0)); cvt2(a, 26, PA(1))
    a(f"""v_permlane16_swap_b32 v24, v26
          v_permlane16_swap_b32 v25, v27
          buffer_store_dwordx4 v[24:27], v10, s[{sOUT}:{sOUT+3}], 0 offen offset:{0 if br else 1024}""")

def op_mfmas(s):
    return [f"v_mfma_f32_16x16x32_bf16 {vr(PA(ct),4)}, {vr(WF(s,ct),4)}, {vr(OF(s),4)}, {vr(PA(ct),4) if s else 0}" for ct in range(4)]

def phase_out(a):
    a("s_setprio 0\nv_xor_b32 v17, 0x1000, v16")
    op_waddr(a, 0)
    for l in op_wreads(0): a(l)
    a("s_waitcnt vmcnt(1)")
    for s in range(8):
        if s < 7:
            for l in op_wreads(s+1): a(l)
        a(f"s_waitcnt lgkmcnt({8 if s < 7 else 0})")
        for m in op_mfmas(s): a(m)
    stamp(a, 12)
    def publish(a):
        a("s_waitcnt vmcnt(0)")
        flag_store(a, 57)
        stamp(a, 13)
    op_finish(a, 0, publish)
    stamp(a, 14)
    op_waddr(a, 1)
    for s in range(8):
        for l in op_wreads(s): a(l)
    vpoll(a, "L_oa_poll", 19, 18, 65)
    a("s_waitcnt lgkmcnt(0)")
    stamp(a, 15)
    op_oloads(a, 1)
    for s in range(8):
        a(f"s_waitcnt vmcnt({7-s})")
        if s == 0: stamp(a, 16)
        for m in op_mfmas(s): a(m)
    stamp(a, 17)
    op_finish(a, 1)
    a(f"""s_or_b32 s50, s2, s{sWAVE}
          s_cbranch_scc1 L_noepoch
          s_mov_b32 s50, {F_E}""")
    flag_store(a, 50)
    a.label("L_noepoch")
    stamp(a, 18); rstamp(a, 63)
    if STAMP: a("v_writelane_b32 v7, s70, 19")
    stamp_flush(a)

HEAD = open("cdna_kernels/" + NAME + ".s.ref").read().split("; Override launch")[0]
def build(path):
    a = Asm()
    entry(a)
    a(f"""s_cmp_ge_u32 s{sWAVE}, 4
          s_cbranch_scc1 L_consumer""")
    loader(a)
    a("s_branch L_qkv_done")
    a.label("L_consumer")
    consumer(a)
    a.label("L_qkv_done")
    phase_att(a)
    phase_out(a)
    a.label("L_end")
    a("s_endpgm")
    a.label("L_fallback")
    att_fallback(a)
    n = NAME + "_kernel"
    out = [HEAD.rstrip(), f"; @launch grid=(256,1,1) block=(512,1,1) lds={LDS_BYTES}",
           '.amdgcn_target "amdgcn-amd-amdhsa--gfx950"\n.text', f".globl {n}\n.p2align 8\n.type {n},@function\n{n}:"]
    for l in fix_hazards(a.lines, verbose="-v" in sys.argv):
        out.append(l if l.endswith(":") else "    " + l)
    out.append(f""".section .rodata,"a"
.p2align 6
.amdhsa_kernel {n}
  .amdhsa_next_free_vgpr 256
  .amdhsa_next_free_sgpr 96
  .amdhsa_accum_offset 256
  .amdhsa_group_segment_fixed_size 0
  .amdhsa_kernarg_size 72
  .amdhsa_user_sgpr_count 2
  .amdhsa_user_sgpr_kernarg_segment_ptr 1
  .amdhsa_system_sgpr_workgroup_id_x 1
.end_amdhsa_kernel
""")
    open(path, "w").write("\n".join(out))

if __name__ == "__main__":
    build(OPT.get("out", "stamp.s" if STAMP else "fused.s"))
```

```python
import sys, struct
from asmlib import *

NAME = "concat_heads__softmax_full_mha__sliding_local_dilated__prompt"
MB = 1 << 20
QF, KF, VF, OA, OB, FL = 0, 2*MB, 4*MB, 6*MB, 8*MB, 10*MB
F_E, F_KV, F_OB, F_OA = FL, FL + 4096, FL + 8192, FL + 12288
WS_BYTES = 11*MB
def f2u(x): return struct.unpack("<I", struct.pack("<f", x))[0]
LOG2E = 1.4426950408889634
CSC = f2u(0.25*LOG2E)
SLOT = 34816; XREG = 10240
OPT = dict(a.split("=") for a in sys.argv[1:] if "=" in a)
def opt(k, d): return type(d)(OPT.get(k, d))
sX, sW, sWS, sOUT = 24, 28, 32, 36
sWAVE = 40
sTB, sHG, sROT = 41, 42, 43
sH, sB = 44, 45
sTO, sCO = 46, 47
sC = 48
sTAG = 49
sW4 = 22
SPIN = 1 << 16
sc = "sc1"

STAMP = "-stamp" in sys.argv
ST = 10*MB + 512*1024
def stamp(a, i):
    if STAMP: a(f"s_memtime s[94:95]\ns_waitcnt lgkmcnt(0)\nv_writelane_b32 v7, s94, {i}")
def rstamp(a, i):
    if STAMP: a(f"s_memrealtime s[94:95]\ns_waitcnt lgkmcnt(0)\nv_writelane_b32 v7, s94, {i}")
def stamp_flush(a):
    if not STAMP: return
    a(f"""s_lshl_b32 s50, s2, 3
          s_add_u32 s50, s50, s{sWAVE}
          s_lshl_b32 s50, s50, 8
          s_add_u32 s50, s50, {ST}
          v_lshlrev_b32 v1, 2, v0
          buffer_store_dword v7, v1, s[{sWS}:{sWS+3}], s50 offen""")

def diag_hold(a, point):
    if OPT.get("hold") != point: return
    l = a.newlabel("L_hold")
    a.label(l)
    a(f"""s_memrealtime s[94:95]
          s_waitcnt lgkmcnt(0)
          s_sub_u32 s94, s94, s92
          s_cmp_lt_u32 s94, 10000
          s_cbranch_scc1 {l}""")

def srd(a, d, p, nbytes):
    a(f"s_mov_b32 s{d}, s{p}\ns_mov_b32 s{d+1}, s{p+1}\ns_mov_b32 s{d+2}, {nbytes}\ns_mov_b32 s{d+3}, 0x20000")

def entry(a):
    a(f"""s_cmp_ge_u32 s2, 256
          s_cbranch_scc1 L_end
          s_load_dwordx16 s[4:19], s[0:1], 0
          s_load_dwordx2 s[20:21], s[0:1], 64""")
    if STAMP or "hold" in OPT: a("s_memtime s[90:91]\ns_memrealtime s[92:93]")
    a(f"""v_lshrrev_b32 v1, 6, v0
          v_and_b32 v0, 63, v0
          v_readfirstlane_b32 s{sWAVE}, v1
          s_and_b32 s50, s2, 7
          s_lshr_b32 s51, s2, 3
          s_lshr_b32 s{sB}, s51, 2
          s_and_b32 s53, s51, 3
          s_lshr_b32 s54, s50, 1
          s_lshl_b32 s54, s54, 3
          s_add_u32 s{sTB}, s54, s{sB}
          s_and_b32 s54, s50, 1
          s_lshl_b32 s54, s54, 2
          s_add_u32 s{sHG}, s54, s53
          s_lshl_b32 s54, s53, 1
          s_add_u32 s{sROT}, s54, s{sB}
          s_and_b32 s{sROT}, s{sROT}, 7
          s_lshl_b32 s54, s50, 2
          s_add_u32 s{sH}, s54, s53
          s_lshr_b32 s55, s51, 3
          s_add_u32 s{sTO}, s54, s55
          s_and_b32 s{sCO}, s51, 7
          s_mov_b32 s{sC}, {CSC:#x}
          s_and_b32 s{sW4}, s{sWAVE}, 3
          v_lshlrev_b32 v14, 4, v0""")

def ws_setup(a):
    srd(a, sWS, 20, WS_BYTES)
    a(f"""s_add_u32 s68, s20, {FL}
          s_addc_u32 s69, s21, 0""")
def epoch_load(a):
    ws_setup(a)
    a(f"s_load_dword s{sTAG}, s[68:69], 0")
def epoch_tag(a):
    a(f"""s_waitcnt lgkmcnt(0)
          s_mul_i32 s{sTAG}, s{sTAG}, 0x9e3779b1
          s_add_u32 s{sTAG}, s{sTAG}, 0x7f4a7c15""")
def flag_store(a, soff):
    a(f"""v_mov_b32 v1, 0
          v_mov_b32 v2, s{sTAG}
          s_mov_b64 exec, 1
          buffer_store_dword v2, v1, s[{sWS}:{sWS+3}], s{soff} offen {sc}
          s_mov_b64 exec, -1""")

ACC = 32
aQ = lambda i: ACC + 4*i
aK = lambda i: ACC + 16 + 4*(i+1)
aV = lambda i: ACC + 36 + 4*(i+1)
F0, F1 = 88, 120
fX = lambda F, i: F + 4*(i+1)
fW = lambda F, seg: F + 20 + 4*seg

def kv_flag_load(a):
    a(f"""s_add_u32 s50, s{sWAVE}, s{sB}
          s_and_b32 s50, s50, 7
          s_lshl_b32 s50, s50, 4
          s_lshl_b32 s51, s{sH}, 7
          s_add_u32 s51, s51, {F_KV - FL}
          s_add_u32 s66, s50, s51
          s_lshl_b32 s50, s{sB}, 2
          s_lshr_b32 s52, s{sWAVE}, 1
          s_add_u32 s50, s50, s52
          s_lshl_b32 s50, s50, 2
          s_add_u32 s67, s50, s51
          s_add_u32 s71, s51, {FL}
          s_load_dwordx4 s[72:75], s[68:69], s66
          s_load_dword s76, s[68:69], s67""")
def vpoll(a, lab, vdst, voff, soff):
    a("s_mov_b32 s70, 0")
    a.label(lab)
    a(f"""buffer_load_dword v{vdst}, v{voff}, s[{sWS}:{sWS+3}], s{soff} offen {sc}
          s_add_u32 s70, s70, 1
          s_cmp_gt_u32 s70, {SPIN}
          s_waitcnt vmcnt(0)
          v_cmp_ne_u32 vcc, s{sTAG}, v{vdst}
          s_cbranch_scc1 {lab}_x
          s_nop 0
          s_cbranch_vccnz {lab}""")
    a.label(lab + "_x")
def kv_flag_wait(a, tag):
    a(f"""s_waitcnt lgkmcnt(0)
          s_xor_b32 s72, s72, s{sTAG}
          s_xor_b32 s73, s73, s{sTAG}
          s_xor_b32 s74, s74, s{sTAG}
          s_xor_b32 s75, s75, s{sTAG}
          s_xor_b32 s76, s76, s{sTAG}
          s_or_b64 s[72:73], s[72:73], s[74:75]
          s_or_b32 s72, s72, s73
          s_mov_b32 s70, 0
          s_or_b32 s72, s72, s76
          s_cbranch_scc0 L_kvok_{tag}
          v_and_b32 v1, 31, v0
          v_lshlrev_b32 v1, 2, v1""")
    vpoll(a, f"L_kvp_{tag}", 2, 1, 71)
    a.label(f"L_kvok_{tag}")
    if STAMP: a("v_writelane_b32 v7, s70, 20")

def loader(a):
    a(f"""v_lshrrev_b32 v1, 3, v0
          v_and_b32 v2, 7, v0
          s_and_b32 s51, s{sW4}, 1
          s_lshl_b32 s52, s51, 2
          v_lshrrev_b32 v3, 1, v1
          v_add_u32 v4, s52, v3
          v_xor_b32 v4, v4, v2
          v_lshlrev_b32 v4, 4, v4
          v_lshl_add_u32 v4, v1, 10, v4
          s_lshl_b32 s53, s{sTB}, 16
          s_lshl_b32 s54, s{sW4}, 13
          s_add_u32 s54, s53, s54
          v_add_u32 v8, s54, v4
          s_lshl_b32 s52, s{sW4}, 1
          v_add_u32 v4, s52, v3
          v_xor_b32 v4, v4, v2
          v_and_b32 v4, 7, v4
          v_lshlrev_b32 v4, 4, v4
          v_lshl_add_u32 v4, v1, 10, v4
          s_max_u32 s53, s53, 16384
          s_sub_u32 s53, s53, 16384
          s_lshl_b32 s54, s{sW4}, 12
          s_add_u32 s54, s53, s54
          v_add_u32 v9, s54, v4
          ; W rows
          v_and_b32 v4, 1, v3
          s_lshl_b32 s52, s51, 1
          v_add_u32 v4, s52, v4
          v_lshlrev_b32 v4, 1, v4
          v_xor_b32 v4, v4, v2
          v_lshlrev_b32 v4, 4, v4
          v_mul_u32_u24 v5, 3072, v1
          v_add_u32 v4, v4, v5
          s_mul_i32 s53, s{sW4}, 24576
          s_lshl_b32 s54, s{sHG}, 7
          s_add_u32 s54, s53, s54
          v_add_u32 v10, s54, v4
          s_lshl_b32 s56, s{sW4}, 10
          s_add_u32 s56, s56, 2048
          s_lshl_b32 s57, s{sW4}, 9
          s_mul_i32 s58, s{sW4}, 3072
          s_add_u32 s58, s58, {XREG}
          s_mov_b32 s59, 0
          s_mov_b32 s60, 0
          s_mov_b32 s61, s{sROT}
          s_mov_b32 s{sX+2}, {2*MB}
          s_mov_b32 s{sX+3}, 0x20000
          s_mov_b32 s{sW+2}, {512*3072}
          s_mov_b32 s{sW+3}, 0x20000
          s_waitcnt lgkmcnt(0)
          s_mov_b64 s[{sX}:{sX+1}], s[4:5]
          s_mov_b64 s[{sW}:{sW+1}], s[6:7]""")
    if STAMP: a("v_writelane_b32 v7, s90, 0\nv_writelane_b32 v7, s92, 62")
    a.label("L_ld_loop")
    a(f"""s_lshl_b32 s62, s61, 7
          s_mul_i32 s63, s61, {64*3072}
          s_add_u32 s64, s62, 32768
          s_add_u32 s65, s63, {32*3072}
          s_add_u32 m0, s60, s56
          s_cmp_lt_u32 s59, 3
          s_cbranch_scc1 L_ld_go
          s_cmp_lt_u32 s59, 9
          s_cbranch_scc1 L_ld_w16
          s_cmp_eq_u32 s59, 9
          s_cbranch_scc1 L_ld_w17
          s_waitcnt vmcnt(18)
          s_branch L_ld_bar""")
    a.label("L_ld_w17")
    a("s_waitcnt vmcnt(17)\ns_branch L_ld_bar")
    a.label("L_ld_w16")
    a("s_waitcnt vmcnt(16)")
    a.label("L_ld_bar")
    a("s_barrier")
    a.label("L_ld_go")
    a(f"""buffer_load_dwordx4 v8, s[{sX}:{sX+3}], s62 offen lds
          s_add_u32 m0, m0, 4096""")
    if STAMP: a("s_memtime s[94:95]")
    a(f"""buffer_load_dwordx4 v8, s[{sX}:{sX+3}], s64 offen lds
          s_add_u32 m0, s60, s58
          s_cmp_lt_u32 s59, 8
          buffer_load_dwordx4 v10, s[{sW}:{sW+3}], s63 offen lds
          buffer_load_dwordx4 v10, s[{sW}:{sW+3}], s63 offen offset:1024 lds
          buffer_load_dwordx4 v10, s[{sW}:{sW+3}], s63 offen offset:2048 lds
          s_cbranch_scc1 L_ld_nohalo
          s_add_u32 m0, s60, s57
          s_mov_b32 exec_hi, 0
          buffer_load_dwordx4 v9, s[{sX}:{sX+3}], s62 offen lds
          s_mov_b32 exec_hi, -1""")
    a.label("L_ld_nohalo")
    if STAMP: a("s_add_u32 m0, s59, 32\ns_waitcnt lgkmcnt(0)\nv_writelane_b32 v7, s94, m0")
    a(f"""s_add_u32 s66, s60, s58
          s_add_u32 m0, s66, 12288
          s_add_u32 s61, s61, 1
          s_and_b32 s61, s61, 7
          s_add_u32 s60, s60, {SLOT}
          s_cmp_eq_u32 s60, {4*SLOT}
          s_cselect_b32 s60, 0, s60
          s_add_u32 s59, s59, 1
          buffer_load_dwordx4 v10, s[{sW}:{sW+3}], s65 offen lds
          buffer_load_dwordx4 v10, s[{sW}:{sW+3}], s65 offen offset:1024 lds
          buffer_load_dwordx4 v10, s[{sW}:{sW+3}], s65 offen offset:2048 lds
          s_cmp_eq_u32 s59, 3
          s_cbranch_scc0 L_ld_not3""")
    epoch_load(a)
    v_const_init(a, range(192, 256))
    epoch_tag(a)
    a.label("L_ld_not3")
    a(f"""s_cmp_eq_u32 s59, 8
          s_cbranch_scc0 L_ld_noswitch
          s_mov_b64 s[{sX}:{sX+1}], s[10:11]
          s_mov_b64 s[{sW}:{sW+1}], s[12:13]""")
    a.label("L_ld_noswitch")
    a(f"""s_cmp_lt_u32 s59, 16
          s_cbranch_scc1 L_ld_loop""")
    ws_setup(a)
    a("s_waitcnt vmcnt(18)\ns_barrier")
    stamp(a, 48)
    a("s_waitcnt vmcnt(9)\ns_barrier")
    stamp(a, 49)
    kv_flag_load(a)
    a("s_waitcnt vmcnt(0)\ns_barrier")
    kv_flag_wait(a, "l")
    stamp(a, 50)
    att_loads(a)

def gemm_mfmas(F, halo):
    L = []
    for i in range(-1 if halo else 0, 4):
        if i >= 0: L.append(f"v_mfma_f32_16x16x32_bf16 {vr(aQ(i),4)}, {vr(fW(F,0),4)}, {vr(fX(F,i),4)}, {vr(aQ(i),4)}")
        L.append(f"v_mfma_f32_16x16x32_bf16 {vr(aK(i),4)}, {vr(fW(F,1),4)}, {vr(fX(F,i),4)}, {vr(aK(i),4)}")
        L.append(f"v_mfma_f32_16x16x32_bf16 {vr(aV(i),4)}, {vr(fX(F,i),4)}, {vr(fW(F,2),4)}, {vr(aV(i),4)}")
    return L
def gemm_reads(F, s, halo):
    L = []
    for seg in range(3):
        for jj in range(2):
            L.append(f"ds_read_b64_tr_b16 {vr(fW(F,seg)+2*jj,2)}, v13 offset:{XREG + s*12288 + seg*1024 + jj*512}")
    for i in range(-1 if halo else 0, 4):
        L.append(f"ds_read_b128 {vr(fX(F,i),4)}, v{11+s} offset:{(i+1)*2048}")
    return L
def interleave(a, M, R, per=2):
    R = list(R)
    for m in M:
        a(m)
        for _ in range(per):
            if R: a(R.pop(0))
    for r in R: a(r)

def gemm_init(a, halo):
    for r in range(ACC, ACC+56): a(f"v_mov_b32 v{r}, 0")
    rng = range(F1, F1+32) if not halo else list(range(F1, F1+4)) + list(range(F1+20, F1+32))
    for r in rng: a(f"v_mov_b32 v{r}, 0")
def gemm_loop(a, halo, tag, before_tail=None):
    a("s_mov_b32 s59, 0")
    a.label(f"L_g_{tag}")
    a(f"""v_add_u32 v11, s60, v8
          v_add_u32 v12, s60, v9
          v_add_u32 v13, s60, v10
          s_add_u32 s60, s60, {SLOT}
          s_cmp_eq_u32 s60, {4*SLOT}
          s_cselect_b32 s60, 0, s60
          s_add_u32 s59, s59, 1
          s_barrier""")
    interleave(a, gemm_mfmas(F1, halo), gemm_reads(F0, 0, halo))
    a("s_waitcnt lgkmcnt(0)")
    interleave(a, gemm_mfmas(F0, halo), gemm_reads(F1, 1, halo))
    a(f"""s_cmp_lt_u32 s59, 8
          s_waitcnt lgkmcnt(0)
          s_cbranch_scc1 L_g_{tag}""")
    if before_tail: before_tail(a)
    for m in gemm_mfmas(F1, halo): a(m)

def cvt2(a, d, s):
    a(f"v_cvt_pk_bf16_f32 v{d}, v{s}, v{s+1}\nv_cvt_pk_bf16_f32 v{d+1}, v{s+2}, v{s+3}")

def consumer(a):
    a("s_waitcnt lgkmcnt(0)")
    if STAMP: a("v_writelane_b32 v7, s90, 0\nv_writelane_b32 v7, s92, 62")
    epoch_load(a)
    local_masks(a)
    a(f"""v_and_b32 v1, 15, v0
          v_lshrrev_b32 v2, 4, v0
          v_lshrrev_b32 v3, 1, v1
          v_xor_b32 v3, v3, v2
          v_lshlrev_b32 v3, 4, v3
          v_lshl_add_u32 v8, v1, 7, v3
          v_xor_b32 v9, 64, v8
          v_bfe_u32 v4, v0, 2, 2
          v_lshrrev_b32 v5, 1, v4
          v_and_b32 v6, 1, v2
          v_lshl_add_u32 v5, v6, 1, v5
          v_xor_b32 v5, s{sW4}, v5
          v_lshlrev_b32 v5, 5, v5
          v_lshl_add_u32 v5, v4, 7, v5
          v_and_b32 v6, 3, v0
          v_lshl_add_u32 v5, v6, 3, v5
          v_mul_u32_u24 v6, 3072, v2
          v_add_u32 v10, v5, v6
          s_mov_b32 s60, 0""")
    v_const_init(a, range(192, 256))
    gemm_init(a, False)
    epoch_tag(a)
    stamp(a, 1)
    diag_hold(a, "c0")
    gemm_loop(a, False, "A")
    stamp(a, 2)
    a(f"""s_lshl_b32 s50, s{sHG}, 2
          s_add_u32 s50, s50, s{sW4}
          s_lshl_b32 s51, s50, 16
          s_lshl_b32 s52, s{sTB}, 11
          s_add_u32 s51, s51, s52
          s_add_u32 s52, s51, {KF}
          s_add_u32 s53, s51, {VF}
          s_lshl_b32 s54, s50, 7
          s_lshl_b32 s55, s{sTB}, 2
          s_add_u32 s54, s54, s55
          s_add_u32 s54, s54, {F_KV}""")
    P = F0
    for (acc, so, scale, base) in ((aK, 52, False, P), (aV, 53, False, P+8), (aQ, 51, True, P+16)):
        if scale:
            for r in range(aQ(0), aQ(0)+16): a(f"v_mul_f32 v{r}, s{sC}, v{r}")
        for i in range(4): cvt2(a, base+2*i, acc(i))
        for pr in range(2):
            b = base + 4*pr
            a(f"v_permlane16_swap_b32 v{b}, v{b+2}\nv_permlane16_swap_b32 v{b+1}, v{b+3}")
        for pr in range(2):
            a(f"buffer_store_dwordx4 {vr(base+4*pr,4)}, v14, s[{sWS}:{sWS+3}], s{so} offen offset:{pr*1024} {sc}")
    gemm_init(a, True)
    stamp(a, 3)
    a("s_waitcnt vmcnt(0)")
    flag_store(a, 54)
    stamp(a, 4)
    diag_hold(a, "a1")
    gemm_loop(a, True, "B", kv_flag_load)
    stamp(a, 5)
    local_attn(a)
    stamp(a, 6)

def local_attn(a):
    pQ = lambda i: 88 + 2*i
    pK = lambda i: 96 + 2*(i+1)
    pV = lambda i: 106 + 2*(i+1)
    Sx = lambda i: 120 + 8*i
    for i in range(-1, 4): cvt2(a, pK(i), aK(i))
    for i in range(4): cvt2(a, pQ(i), aQ(i))
    for i in range(4):
        a(f"v_mfma_f32_16x16x16_bf16 {vr(Sx(i),4)}, {vr(pK(i-1),2)}, {vr(pQ(i),2)}, {vr(24 if i==0 else 20,4)}")
        a(f"v_mfma_f32_16x16x16_bf16 {vr(Sx(i)+4,4)}, {vr(pK(i),2)}, {vr(pQ(i),2)}, v[16:19]")
    for i in range(-1, 4): cvt2(a, pV(i), aV(i))
    M = lambda i: 32 + i
    Tm = lambda i: 36 + i
    for i in range(4):
        s = Sx(i)
        a(f"v_max3_f32 v{M(i)}, v{s}, v{s+1}, v{s+2}\nv_max3_f32 v{Tm(i)}, v{s+3}, v{s+4}, v{s+5}")
    for i in range(4):
        s = Sx(i)
        a(f"v_max3_f32 v{M(i)}, v{M(i)}, v{s+6}, v{s+7}")
    for i in range(4): a(f"v_max_f32 v{M(i)}, v{M(i)}, v{Tm(i)}")
    for sw in ("v_permlane32_swap_b32", "v_permlane16_swap_b32"):
        for i in range(4): a(f"v_mov_b32 v{Tm(i)}, v{M(i)}")
        for i in range(4): a(f"{sw} v{M(i)}, v{Tm(i)}")
        for i in range(4): a(f"v_max_f32 v{M(i)}, v{M(i)}, v{Tm(i)}")
    for i in range(4): a(f"v_mul_f32 v{M(i)}, s{sC}, v{M(i)}")
    kv_flag_wait(a, "c")
    att_loads(a)
    pP = lambda i: 40 + 4*i
    oO = lambda i: 56 + 4*i
    oL = lambda i: 72 + 4*i
    for i in range(4):
        s = Sx(i)
        for r in range(8): a(f"v_fma_f32 v{s+r}, v{s+r}, s{sC}, -v{M(i)}")
        for r in range(8): a(f"v_exp_f32 v{s+r}, v{s+r}")
        cvt2(a, pP(i), s); cvt2(a, pP(i)+2, s+4)
        if i > 0:
            a(f"v_mfma_f32_16x16x32_bf16 {vr(oL(i-1),4)}, v[28:31], {vr(pP(i-1),4)}, 0")
            a(f"v_mfma_f32_16x16x32_bf16 {vr(oO(i-1),4)}, {vr(pV(i-2),4)}, {vr(pP(i-1),4)}, 0")
    a(f"v_mfma_f32_16x16x32_bf16 {vr(oL(3),4)}, v[28:31], {vr(pP(3),4)}, 0")
    a(f"v_mfma_f32_16x16x32_bf16 {vr(oO(3),4)}, {vr(pV(2),4)}, {vr(pP(3),4)}, 0")
    a(f"""s_lshl_b32 s50, s{sHG}, 2
          s_add_u32 s50, s50, s{sW4}
          s_lshl_b32 s52, s50, 2
          s_lshl_b32 s50, s50, 10
          s_lshl_b32 s51, s{sTB}, 16
          s_add_u32 s50, s50, s51
          s_add_u32 s50, s50, {OB}
          s_add_u32 s51, s50, 32768
          s_lshl_b32 s53, s{sTB}, 7
          s_add_u32 s52, s52, s53
          s_add_u32 s23, s52, {F_OB}""")
    for i in range(4):
        a(f"v_rcp_f32 v{oL(i)}, v{oL(i)}")
    for i in range(4):
        for r in range(4): a(f"v_mul_f32 v{oO(i)+r}, v{oL(i)}, v{oO(i)+r}")
        cvt2(a, 128+2*i, oO(i))
    for pr in range(2):
        b = 128 + 4*pr
        a(f"v_permlane16_swap_b32 v{b}, v{b+2}\nv_permlane16_swap_b32 v{b+1}, v{b+3}")

def local_masks(a):
    NEG = f2u(-1e30)
    a(f"""v_and_b32 v1, 15, v0
          v_lshrrev_b32 v2, 4, v0
          v_lshlrev_b32 v2, 2, v2
          v_sub_u32 v1, v1, v2
          v_mov_b32 v3, {NEG:#x}
          s_cmp_eq_u32 s{sTB}, 0
          s_cselect_b64 s[52:53], -1, 0""")
    for r in range(4):
        a(f"""v_subrev_u32 v4, {r}, v1
              v_and_b32 v5, -15, v4
              v_cmp_eq_u32 vcc, 0, v5
              v_add_u32 v4, 16, v4
              v_and_b32 v5, -15, v4
              v_cndmask_b32 v{16+r}, v3, 0, vcc
              v_cmp_eq_u32 vcc, 0, v5
              v_mov_b32 v{28+r}, 0x3f803f80
              v_cndmask_b32 v{20+r}, v3, 0, vcc
              v_cndmask_b32 v{24+r}, v{20+r}, v3, s[52:53]""")

S0, S1, O0, O1, CC = 32, 48, 64, 80, 96
Qr = (116, 112); NM = (120, 122); AC = 124; ZZ = 126; IDX = 31
KR = lambda t: 160 + 4*t
VR = lambda t, blk: 192 + 8*t + 4*blk
L_XA, L_XB, L_XL = 0, 8192, 16384
L_M = L_XL + 4
L_Q = 24576
L_WO = 32768
LDS_BYTES = L_WO + 131072

def v_const_init(a, regs):
    a(f"""v_and_b32 v1, 27, v0
          v_cmp_eq_u32 vcc, 16, v1
          v_mov_b32 v2, 0x3f803f80
          v_cndmask_b32 v2, 0, v2, vcc""")
    for r in regs: a(f"v_mov_b32 v{r}, v2")

def att_loads(a):
    a(f"""s_add_u32 s72, s{sWAVE}, s{sB}
          s_and_b32 s72, s72, 7
          s_lshl_b32 s72, s72, 13
          s_lshl_b32 s77, s{sH}, 16
          s_add_u32 s72, s72, s77
          s_add_u32 s74, s72, {VF}
          s_add_u32 s72, s72, {KF}
          s_add_u32 s73, s72, 4096
          s_add_u32 s75, s74, 4096
          s_lshl_b32 s76, s{sB}, 3
          s_add_u32 s76, s76, s{sWAVE}
          s_lshl_b32 s76, s76, 10
          s_add_u32 s76, s76, s77
          v_and_b32 v15, 0x2f0, v14
          s_mov_b32 s58, 0xffff
          s_mov_b32 s59, 0xffff
          buffer_load_dwordx4 {vr(Qr[0],4)}, v14, s[{sWS}:{sWS+3}], s76 offen {sc}""")
    for t in range(8):
        a(f"buffer_load_dwordx4 {vr(KR(t),4)}, v14, s[{sWS}:{sWS+3}], s{72+t//4} offen offset:{(t%4)*1024} {sc}")
        a("s_mov_b64 exec, s[58:59]")
        for blk in range(2):
            a(f"buffer_load_dwordx4 {vr(VR(t,blk),4)}, v15, s[{sWS}:{sWS+3}], s{74+t//4} offen offset:{(t%4)*1024+blk*256} {sc}")
        a("s_mov_b64 exec, -1")

def max16(a, S, d, t):
    a(f"""v_max3_f32 v{d}, v{S}, v{S+1}, v{S+2}
          v_max3_f32 v{t}, v{S+3}, v{S+4}, v{S+5}
          v_max3_f32 v{d}, v{d}, v{S+6}, v{S+7}
          v_max3_f32 v{t}, v{t}, v{S+8}, v{S+9}
          v_max3_f32 v{d}, v{d}, v{S+10}, v{S+11}
          v_max3_f32 v{t}, v{t}, v{S+12}, v{S+13}
          v_max3_f32 v{d}, v{d}, v{S+14}, v{S+15}
          v_max_f32 v{d}, v{d}, v{t}""")

def qk(S, t, q): return f"v_mfma_f32_32x32x16_bf16 {vr(S,16)}, {vr(KR(t),4)}, {vr(q,4)}, {vr(CC,16)}"
def pv(O, t, blk, S): return f"v_smfmac_f32_32x32x32_bf16 {vr(O,16)}, {vr(VR(t,blk),4)}, {vr(S+8*blk,8)}, v{IDX}"
def zero16(O): return f"v_mfma_f32_32x32x8_bf16 {vr(O,16)}, {vr(ZZ,2)}, {vr(ZZ,2)}, 0"
def cset(p): return f"v_mfma_f32_32x32x8_bf16 {vr(CC,16)}, {vr(AC,2)}, {vr(NM[p],2)}, 0"

def att_side(a):
    a(f"""s_cmp_ge_u32 s61, 2
          s_cbranch_scc1 L_side2
          s_cmp_lt_u32 s{sWAVE}, 4
          s_cbranch_scc1 L_side_dma
          s_cmp_eq_u32 s61, 0
          s_cbranch_scc0 L_side_flag
          buffer_store_dwordx4 v[128:131], v14, s[{sWS}:{sWS+3}], s50 offen {sc}
          buffer_store_dwordx4 v[132:135], v14, s[{sWS}:{sWS+3}], s51 offen {sc}
          s_branch L_side_dma""")
    a.label("L_side_flag")
    flag_store(a, 23)
    a.label("L_side_dma")
    a("s_mov_b32 s52, 0")
    for i in range(8):
        a(f"buffer_load_dwordx4 v13, s[{sW}:{sW+3}], s52 offen lds")
        a(f"s_add_u32 m0, m0, 8192\ns_add_u32 s52, s52, 65536")
    a(f"""s_mov_b64 s[{sW}:{sW+1}], s[8:9]
          s_branch L_side_end""")
    a.label("L_side2")
    a(f"""s_cmp_eq_u32 s61, 2
          s_cbranch_scc1 L_side_poll
          s_mov_b32 s70, 0""")
    a.label("L_side_chk")
    a(f"""v_cmp_ne_u32 vcc, s{sTAG}, v19
          s_nop 1
          s_cbranch_vccz L_side_ok
          s_add_u32 s70, s70, 1
          s_cmp_gt_u32 s70, {SPIN}
          s_cbranch_scc1 L_side_ok
          buffer_load_dword v19, v18, s[{sWS}:{sWS+3}], s64 offen {sc}
          s_waitcnt vmcnt(0)
          s_branch L_side_chk""")
    a.label("L_side_ok")
    op_oloads(a, 0)
    a("s_branch L_side_end")
    a.label("L_side_poll")
    a(f"buffer_load_dword v19, v18, s[{sWS}:{sWS+3}], s64 offen {sc}")
    a.label("L_side_end")

def att_body(a, p):
    O, Op = (O0, O1) if p == 0 else (O1, O0)
    TB_ = opt("tbar", 5)
    PR = opt("prio", 1)
    for t in range(8):
        Sa, Sb = (S0, S1) if t % 2 == 0 else (S1, S0)
        extra = {}
        def ex(i, s): extra.setdefault(i, []).append(s)
        ex(1, pv(Op, 7, 1, Sb) if t == 0 else pv(O, t-1, 1, Sb))
        if p == 0: ex(4, f"s_waitcnt vmcnt({max(0, 20-3*t)})")
        ex(4, qk(Sb, t+1, Qr[p]) if t < 7 else qk(Sb, 0, Qr[1-p]))
        ex(10, pv(O, t, 0, Sa))
        if t == 1:
            ex(0, f"ds_write_b128 v16, {vr(Op,4)} offset:{L_XA}")
            ex(2, f"ds_write_b128 v16, {vr(Op+4,4)} offset:{L_XB}")
            ex(3, f"ds_write_b32 v16, v{Op+8} offset:{L_XL}")
            ex(7, "s_add_u32 s60, s60, " + ("2048" if p == 0 else "s63"))
            ex(8, "s_and_b32 s60, s60, 0x1fff")
            ex(9, "v_add_u32 v16, s60, v14")
            ex(11, "s_add_u32 s62, s62, 1024")
            ex(12, "s_and_b32 s62, s62, 0x1fff")
            ex(13, "v_add_u32 v17, s62, v14")
        if t == TB_:
            ex(7, "s_waitcnt lgkmcnt(0)")
            ex(7, "s_barrier")
            if PR: ex(7, "s_setprio 3")
            ex(7, f"ds_read_b32 v{NM[1-p]}, v17 offset:{L_M}")
            ex(8, f"ds_read_b128 {vr(Qr[1-p],4)}, v17 offset:{L_Q}")
            ex(9, f"ds_read_b128 {vr(Op,4)}, v16 offset:{L_XA}")
            ex(11, f"ds_read_b128 {vr(Op+4,4)}, v16 offset:{L_XB}")
            ex(12, f"ds_read_b32 v{Op+8}, v16 offset:{L_XL}")
        if PR:
            if t == (TB_+4) % 8: ex(7, "s_setprio 2")
            if t == (TB_+7) % 8: ex(2, "s_setprio 1")
            if t == TB_: ex(0, "s_setprio 0")
        if t == 6:
            ex(6, "s_waitcnt lgkmcnt(0)")
            ex(7, cset(1-p))
        for i in range(16):
            a(f"v_exp_f32 v{Sa+i}, v{Sa+i}")
            for s in extra.get(i, []): a(s)
            if p == 1 and t == 0 and i == 7: att_side(a)

def att_fallback(a):
    a(f"""s_lshl_b32 s51, s{sH}, 16
          s_add_u32 s52, s51, {KF}
          s_add_u32 s54, s51, {VF}
          s_add_u32 s55, s52, 65536
          s_lshl_b32 s53, s62, 10
          v_add_u32 v17, s53, v14
          ds_read_b128 {vr(Qr[0],4)}, v17 offset:{L_Q}
          v_mov_b32 v20, 0xff800000
          s_mov_b32 s53, s52""")
    a.label("L_fb1")
    a(f"""buffer_load_dwordx4 {vr(KR(0),4)}, v14, s[{sWS}:{sWS+3}], s53 offen sc1
          s_add_u32 s53, s53, 1024
          s_waitcnt vmcnt(0) lgkmcnt(0)
          v_mfma_f32_32x32x16_bf16 {vr(S0,16)}, {vr(KR(0),4)}, {vr(Qr[0],4)}, 0""")
    max16(a, S0, 21, 22)
    a(f"""v_max_f32 v20, v20, v21
          s_cmp_lt_u32 s53, s55
          s_cbranch_scc1 L_fb1
          v_mov_b32 v21, v20
          v_permlane32_swap_b32 v20, v21
          v_max_f32 v20, v20, v21""")
    for r in range(16): a(f"v_sub_f32 v{CC+r}, 0, v20\nv_mov_b32 v{O0+r}, 0")
    a.label("L_fb2")
    a(f"""buffer_load_dwordx4 {vr(KR(0),4)}, v14, s[{sWS}:{sWS+3}], s52 offen sc1
          s_mov_b64 exec, s[58:59]
          buffer_load_dwordx4 {vr(VR(0,0),4)}, v15, s[{sWS}:{sWS+3}], s54 offen sc1
          buffer_load_dwordx4 {vr(VR(0,1),4)}, v15, s[{sWS}:{sWS+3}], s54 offen offset:256 sc1
          s_mov_b64 exec, -1
          s_add_u32 s52, s52, 1024
          s_add_u32 s54, s54, 1024
          s_waitcnt vmcnt(0)""")
    a(qk(S0, 0, Qr[0]))
    for i in range(16): a(f"v_exp_f32 v{S0+i}, v{S0+i}")
    a(pv(O0, 0, 0, S0)); a(pv(O0, 0, 1, S0))
    a(f"""s_cmp_lt_u32 s52, s55
          s_nop 7
          s_nop 7
          s_cbranch_scc1 L_fb2
          s_branch L_att_ok""")

def phase_att(a):
    wo_setup(a)
    op_setup(a)
    a(f"""v_mov_b32 v{IDX}, 0xdddd
          v_mov_b32 v{ZZ}, 0
          v_mov_b32 v{ZZ+1}, 0
          v_mov_b32 v{NM[0]+1}, 0
          v_mov_b32 v{NM[1]+1}, 0
          v_mov_b32 v{AC+1}, 0
          v_cmp_gt_u32 vcc, 32, v0
          v_mov_b32 v2, 0x3f80
          s_lshl_b32 s60, s{sWAVE}, 10
          v_cndmask_b32 v{AC}, 0, v2, vcc
          v_add_u32 v16, s60, v14""")
    a(zero16(O0)); a(zero16(O1)); a(zero16(S1))
    a(f"""s_mov_b32 s62, s60
          s_waitcnt vmcnt(23)""")
    stamp(a, 8)
    a(f"""v_mfma_f32_32x32x16_bf16 {vr(S0,16)}, {vr(KR(0),4)}, {vr(Qr[0],4)}, 0
          ds_write_b128 v16, {vr(Qr[0],4)} offset:{L_Q}""")
    max16(a, S0, 20, 21)
    a(f"""v_mov_b32 v21, v20
          v_permlane32_swap_b32 v20, v21
          v_max_f32 v20, v20, v21
          v_cvt_pk_bf16_f32 v{NM[0]}, -v20, 0
          ds_write_b32 v16, v{NM[0]} offset:{L_M}""")
    a(cset(0))
    a("s_mov_b32 s61, 0\ns_mov_b32 s63, 2048")
    a(qk(S0, 0, Qr[0]))
    a("s_nop 11")
    stamp(a, 9)
    diag_hold(a, "att0")
    a(".p2align 3")
    a.label("L_att")
    att_body(a, 0)
    if STAMP: a("s_mov_b32 s89, m0\ns_add_u32 m0, s61, 24"); stamp(a, "m0"); a("s_mov_b32 m0, s89")
    att_body(a, 1)
    a(f"""s_add_u32 s61, s61, 1
          s_cmp_eq_u32 s61, 3
          s_cselect_b32 s63, 1024, s63
          s_cmp_lt_u32 s61, 4
          s_cbranch_scc1 L_att""")
    a(pv(O1, 7, 1, S1))
    stamp(a, 10)
    diag_hold(a, "att1")
    a(f"""s_add_u32 s62, s{sWAVE}, 7
          s_and_b32 s62, s62, 7
          s_mov_b32 s50, {f2u(2.0**-60):#x}
          s_mov_b32 s51, {f2u(2.0**100):#x}
          s_lshl_b32 s56, s{sB}, 3
          s_add_u32 s56, s56, s62
          s_lshl_b32 s57, s56, 7
          s_lshl_b32 s56, s56, 15
          s_lshl_b32 s52, s{sH}, 10
          s_add_u32 s56, s56, s52
          s_add_u32 s56, s56, {OA}
          s_lshl_b32 s52, s{sH}, 2
          s_add_u32 s57, s57, s52
          s_add_u32 s57, s57, {F_OA}""")
    for r in (8, 0, 1, 2, 3, 4, 5, 6, 7): a(f"v_add_f32 v{O0+r}, v{O0+r}, v{O1+r}")
    a(f"""v_add_f32 v20, abs(v{O0}), abs(v{O0+1})
          v_add_f32 v21, abs(v{O0+2}), abs(v{O0+3})
          v_add_f32 v22, abs(v{O0+4}), abs(v{O0+5})
          v_add_f32 v23, abs(v{O0+6}), abs(v{O0+7})
          v_add_f32 v20, v20, v21
          v_add_f32 v22, v22, v23
          v_cmp_lt_f32 s[52:53], s50, v{O0+8}
          v_add_f32 v20, v20, v{O0+8}
          v_add_f32 v20, v20, v22
          v_cmp_gt_f32 vcc, s51, v20
          s_and_b64 vcc, vcc, s[52:53]
          s_cmp_eq_u64 vcc, -1
          s_cbranch_scc0 L_fallback""")
    a.label("L_att_ok")
    a(f"v_rcp_f32 v20, v{O0+8}")
    for r in range(8): a(f"v_mul_f32 v{O0+r}, v20, v{O0+r}")
    cvt2(a, 24, O0); cvt2(a, 26, O0+4)
    a(f"""v_permlane32_swap_b32 v24, v26
          v_permlane32_swap_b32 v25, v27
          buffer_store_dwordx4 v[24:27], v14, s[{sWS}:{sWS+3}], s56 offen {sc}""")
    stamp(a, 11)

def wo_setup(a):
    a(f"""v_lshrrev_b32 v1, 3, v0
          v_and_b32 v2, 7, v0
          v_bfe_u32 v3, v1, 1, 1
          s_and_b32 s52, s{sWAVE}, 1
          s_lshl_b32 s52, s52, 1
          v_add_u32 v3, s52, v3
          v_lshlrev_b32 v3, 1, v3
          v_xor_b32 v3, v3, v2
          v_lshlrev_b32 v3, 4, v3
          v_lshl_add_u32 v3, v1, 10, v3
          s_lshl_b32 s52, s{sWAVE}, 13
          s_lshl_b32 s53, s{sCO}, 7
          s_add_u32 s52, s52, s53
          v_add_u32 v13, s52, v3
          s_lshl_b32 s52, s{sWAVE}, 10
          s_add_u32 m0, s52, {L_WO}""")
    srd(a, sW, 14, 512*1024)

def WF(s, ct):
    i = 4*s + ct
    return 160 + 4*i if i < 24 else 32 + 4*(i-24)
OF = lambda s: 128 + 4*s
PA = lambda ct: 96 + 4*ct
def op_setup(a):
    srd(a, sOUT, 16, 2048*2048)
    a(f"""v_lshrrev_b32 v2, 4, v0
          v_bfe_u32 v4, v0, 2, 2
          v_lshrrev_b32 v5, 1, v4
          v_and_b32 v6, 1, v2
          v_lshl_add_u32 v5, v6, 1, v5
          v_lshlrev_b32 v5, 5, v5
          v_lshl_add_u32 v5, v4, 7, v5
          v_and_b32 v6, 3, v0
          v_lshl_add_u32 v5, v6, 3, v5
          v_lshl_add_u32 v5, v2, 10, v5
          s_lshr_b32 s54, s{sWAVE}, 2
          s_lshl_b32 s52, s54, 15
          s_add_u32 s52, s52, {L_WO}
          v_add_u32 v8, s52, v5
          v_and_b32 v1, 15, v0
          v_lshlrev_b32 v5, 4, v1
          v_lshl_add_u32 v5, v2, 9, v5
          s_lshl_b32 s52, s{sTO}, 1
          s_lshr_b32 s53, s{sW4}, 1
          s_add_u32 s55, s52, s53
          s_lshl_b32 s52, s55, 15
          s_and_b32 s53, s{sW4}, 1
          s_lshl_b32 s53, s53, 8
          s_add_u32 s52, s52, s53
          s_lshl_b32 s53, s54, 14
          s_add_u32 s52, s52, s53
          v_add_u32 v9, s52, v5
          v_and_b32 v5, 1, v2
          v_lshlrev_b32 v5, 5, v5
          v_lshrrev_b32 v6, 1, v2
          v_lshl_add_u32 v5, v6, 4, v5
          v_lshl_add_u32 v5, v1, 11, v5
          s_lshl_b32 s52, s{sTO}, 17
          s_lshl_b32 s53, s{sW4}, 15
          s_add_u32 s52, s52, s53
          s_lshl_b32 s53, s{sCO}, 7
          s_add_u32 s52, s52, s53
          s_lshl_b32 s53, s54, 6
          s_add_u32 s52, s52, s53
          v_add_u32 v10, s52, v5
          v_lshlrev_b32 v18, 2, v1
          s_lshl_b32 s64, s{sTO}, 7
          s_add_u32 s64, s64, s53
          s_add_u32 s64, s64, {F_OB}
          s_lshl_b32 s65, s55, 7
          s_add_u32 s65, s65, s53
          s_add_u32 s65, s65, {F_OA}""")

def op_waddr(a, br):
    a(f"v_add_u32 v20, {br*65536}, v8" if br else "v_mov_b32 v20, v8")
    for ct in range(1, 4): a(f"v_xor_b32 v{20+ct}, {ct*32}, v20")
def op_wreads(s):
    return [f"ds_read_b64_tr_b16 {vr(WF(s,ct)+2*jj,2)}, v{20+ct} offset:{s*4096 + jj*512}" for ct in range(4) for jj in range(2)]

def op_oloads(a, br):
    b = OA if br else OB
    a(f"s_mov_b32 s52, {b}\ns_mov_b32 s53, {b+4096}\ns_mov_b32 s54, {b+8192}\ns_mov_b32 s55, {b+12288}")
    for s in range(8):
        a(f"buffer_load_dwordx4 {vr(OF(s),4)}, v9, s[{sWS}:{sWS+3}], s{52+s//2} offen offset:{(s%2)*2048} {sc}")

def op_finish(a, br, mid=None):
    wr, rd = (16, 17) if br == 0 else (17, 16)
    lab = a.newlabel("L_op")
    a(f"""s_cmp_ge_u32 s{sWAVE}, 4
          s_cbranch_scc1 {lab}_hi
          ds_write_b128 v{wr}, {vr(PA(2),4)} offset:{L_XA}
          ds_write_b128 v{wr}, {vr(PA(3),4)} offset:{L_XB}
          s_branch {lab}_j""")
    a.label(f"{lab}_hi")
    a(f"""ds_write_b128 v{wr}, {vr(PA(0),4)} offset:{L_XA}
          ds_write_b128 v{wr}, {vr(PA(1),4)} offset:{L_XB}""")
    for r in range(8): a(f"v_mov_b32 v{PA(0)+r}, v{PA(2)+r}")
    a.label(f"{lab}_j")
    if mid: mid(a)
    a(f"""s_waitcnt lgkmcnt(0)
          s_barrier
          ds_read_b128 {vr(PA(2),4)}, v{rd} offset:{L_XA}
          ds_read_b128 {vr(PA(3),4)}, v{rd} offset:{L_XB}
          s_waitcnt lgkmcnt(0)""")
    for r in range(8): a(f"v_add_f32 v{PA(0)+r}, v{PA(0)+r}, v{PA(2)+r}")
    cvt2(a, 24, PA(0)); cvt2(a, 26, PA(1))
    a(f"""v_permlane16_swap_b32 v24, v26
          v_permlane16_swap_b32 v25, v27
          buffer_store_dwordx4 v[24:27], v10, s[{sOUT}:{sOUT+3}], 0 offen offset:{0 if br else 1024} {OPT.get("ost","").replace("+"," ")}""")

def op_mfmas(s):
    return [f"v_mfma_f32_16x16x32_bf16 {vr(PA(ct),4)}, {vr(WF(s,ct),4)}, {vr(OF(s),4)}, {vr(PA(ct),4) if s else 0}" for ct in range(4)]

def phase_out(a):
    a("s_setprio 0\nv_xor_b32 v17, 0x1000, v16")
    op_waddr(a, 0)
    for l in op_wreads(0): a(l)
    a("s_waitcnt vmcnt(1)")
    for s in range(8):
        if s < 7:
            for l in op_wreads(s+1): a(l)
        a(f"s_waitcnt lgkmcnt({8 if s < 7 else 0})")
        for m in op_mfmas(s): a(m)
    stamp(a, 12)
    def publish(a):
        a("s_waitcnt vmcnt(0)")
        flag_store(a, 57)
        stamp(a, 13)
    op_finish(a, 0, publish)
    stamp(a, 14)
    op_waddr(a, 1)
    for s in range(8):
        for l in op_wreads(s): a(l)
    vpoll(a, "L_oa_poll", 19, 18, 65)
    a("s_waitcnt lgkmcnt(0)")
    stamp(a, 15)
    op_oloads(a, 1)
    for s in range(8):
        a(f"s_waitcnt vmcnt({7-s})")
        if s == 0: stamp(a, 16)
        for m in op_mfmas(s): a(m)
    stamp(a, 17)
    op_finish(a, 1)
    a(f"""s_or_b32 s50, s2, s{sWAVE}
          s_cbranch_scc1 L_noepoch
          s_mov_b32 s50, {F_E}""")
    flag_store(a, 50)
    a.label("L_noepoch")
    diag_hold(a, "end")
    stamp(a, 18); rstamp(a, 63)
    if STAMP: a("v_writelane_b32 v7, s70, 19")
    stamp_flush(a)

HEAD = open("cdna_kernels/" + NAME + ".s.ref").read().split("; Override launch")[0]
def build(path):
    a = Asm()
    entry(a)
    a(f"""s_cmp_ge_u32 s{sWAVE}, 4
          s_cbranch_scc1 L_consumer""")
    loader(a)
    a("s_branch L_qkv_done")
    a.label("L_consumer")
    consumer(a)
    a.label("L_qkv_done")
    phase_att(a)
    phase_out(a)
    a.label("L_end")
    a("s_endpgm")
    a.label("L_fallback")
    att_fallback(a)
    n = NAME + "_kernel"
    out = [HEAD.rstrip(), f"; @launch grid=(256,1,1) block=(512,1,1) lds={LDS_BYTES}",
           '.amdgcn_target "amdgcn-amd-amdhsa--gfx950"\n.text', f".globl {n}\n.p2align 8\n.type {n},@function\n{n}:"]
    for l in fix_hazards(a.lines, verbose="-v" in sys.argv):
        out.append(l if l.endswith(":") else "    " + l)
    out.append(f""".section .rodata,"a"
.p2align 6
.amdhsa_kernel {n}
  .amdhsa_next_free_vgpr 256
  .amdhsa_next_free_sgpr 96
  .amdhsa_accum_offset 256
  .amdhsa_group_segment_fixed_size 0
  .amdhsa_kernarg_size 72
  .amdhsa_user_sgpr_count 2
  .amdhsa_user_sgpr_kernarg_segment_ptr 1
  .amdhsa_system_sgpr_workgroup_id_x 1
.end_amdhsa_kernel
""")
    open(path, "w").write("\n".join(out))

if __name__ == "__main__":
    build(OPT.get("out", "stamp.s" if STAMP else "fused.s"))
```

```python
import re

class Asm:
    def __init__(self):
        self.lines = []
        self.uid = 0
    def __call__(self, s):
        for l in s.split("\n"):
            l = l.strip()
            if l: self.lines.append(l)
    def label(self, name): self.lines.append(name + ":")
    def newlabel(self, p="L"):
        self.uid += 1
        return f"{p}_{self.uid}"
    def comment(self, s): self.lines.append("; " + s)

def vr(b, n=1):
    return f"v{b}" if n == 1 else f"v[{b}:{b+n-1}]"
def sr(b, n=1):
    return f"s{b}" if n == 1 else f"s[{b}:{b+n-1}]"

_reg = re.compile(r"^(-|abs\(|-abs\(|\|)?([vsa])(\d+|\[(\d+):(\d+)\])\)?\|?$")
def regs_of(op):
    op = op.strip()
    if op in ("vcc",): return {("s", "vcc")}
    if op in ("vcc_lo", "vcc_hi"): return {("s", "vcc")}
    if op in ("exec", "exec_lo", "exec_hi"): return {("s", "exec")}
    if op == "m0": return {("s", "m0")}
    m = _reg.match(op)
    if not m: return set()
    k = m.group(2)
    if m.group(4) is not None:
        return {(k, i) for i in range(int(m.group(4)), int(m.group(5)) + 1)}
    return {(k, int(m.group(3)))}

TRANS = ("v_exp_f32", "v_log_f32", "v_rcp_f32", "v_rsq_f32", "v_sqrt_f32", "v_sin_f32", "v_cos_f32", "v_rcp_iflag_f32")
def passes(op):
    if "32x32" in op: return 8
    if "16x16" in op: return 4
    raise ValueError(op)

class Ins:
    def __init__(self, text):
        self.text = text
        t = text.split(";")[0].strip()
        parts = t.split(None, 1)
        self.op = parts[0]
        op = self.op
        for suf in ("_e32", "_e64"):
            if op.endswith(suf): op = op[:-4]
        self.base = op
        rest = parts[1] if len(parts) > 1 else ""
        ops = [o.strip() for o in re.split(r",(?![^\[]*\])", rest)] if rest else []
        self.mods = ""
        if ops:
            last = ops[-1].split()
            if last:
                ops[-1] = last[0]; self.mods = " ".join(last[1:])
        self.ops = ops
        self.kind = "other"; self.w = set(); self.r = set()
        self.A = self.B = self.C = set()
        R = [regs_of(o) for o in ops]
        if op.startswith("v_mfma") or op.startswith("v_smfmac"):
            self.kind = "mfma"; self.p = passes(op)
            self.w = R[0]; self.A = R[1]; self.B = R[2]
            if op.startswith("v_smfmac"):
                self.C = R[0]; self.B = R[2] | R[3]
            else: self.C = R[3]
            self.r = self.A | self.B | self.C
        elif op.startswith("v_"):
            self.kind = "valu"
            if op.startswith("v_cmp"):
                self.w = R[0]; self.r = set().union(*R[1:])
            elif op.startswith("v_permlane") and "swap" in op:
                self.w = R[0] | R[1]; self.r = R[0] | R[1]
            elif op in ("v_add_co_u32", "v_sub_co_u32", "v_addc_co_u32", "v_subb_co_u32"):
                self.w = R[0] | R[1]; self.r = set().union(*R[2:])
            elif op == "v_nop": pass
            else:
                self.w = R[0]; self.r = set().union(*R[1:]) if len(R) > 1 else set()
                if op.startswith("v_fmac") or op.startswith("v_dot2c") or op == "v_writelane_b32": self.r |= R[0]
                if op == "v_cndmask_b32" and len(ops) == 3: self.r |= {("s", "vcc")}
        elif op.startswith("ds_"):
            self.kind = "ds"
            if op.startswith("ds_read") or op.startswith("ds_bpermute") or op.startswith("ds_swizzle") or "_rtn" in op:
                self.w = R[0]; self.r = set().union(*R[1:])
            else: self.r = set().union(*R)
        elif op.startswith("buffer_") or op.startswith("global_"):
            self.kind = "vmem"
            islds = (" lds" in (" " + self.mods)) or "load_lds" in op
            self.lds = islds
            if op in ("buffer_wbl2", "buffer_inv"): pass
            elif "load" in op and not islds:
                self.w = R[0]; self.r = set().union(*R[1:])
            elif islds:
                self.r = set().union(*R) | {("s", "m0")}
            elif "atomic" in op:
                self.r = set().union(*R)
                if "sc0" in self.mods: self.w = R[0]
            else:
                self.r = set().union(*R)
            self.wide = None
            if "store" in op and (op.endswith("x4") or op.endswith("x3")):
                self.wide = R[0] if op.startswith("buffer") else R[1]
        elif op.startswith("s_"):
            self.kind = "salu"
            if op.startswith("s_cmp") or op.startswith("s_cbranch") or op in ("s_branch", "s_barrier", "s_waitcnt", "s_nop", "s_endpgm", "s_sleep", "s_setprio", "s_bitcmp1_b32", "s_bitcmp0_b32"):
                self.r = set().union(*R) if R else set()
            else:
                self.w = R[0] if R else set(); self.r = set().union(*R[1:]) if len(R) > 1 else set()
                if "saveexec" in op: self.w = self.w | {("s", "exec")}
    def states(self):
        if self.op == "s_nop": return int(self.ops[0], 0) + 1
        return 1

def V(s): return {x for x in s if x[0] in "va"}
def S(s): return {x for x in s if x[0] == "s"}

def need(p, c):
    n = 0
    if p.kind == "valu":
        pw = V(p.w); ps = S(p.w)
        if c.kind == "mfma" and pw & c.r: n = max(n, 2)
        if p.base in TRANS and c.kind == "valu" and c.base not in TRANS and pw & c.r: n = max(n, 1)
        if p.base in TRANS and c.kind in ("vmem", "ds") and pw & c.r: n = max(n, 1)
        if c.kind == "valu" and c.base.startswith("v_permlane") and pw & c.r: n = max(n, 2)
        if c.kind == "valu" and c.base in ("v_readlane_b32", "v_readfirstlane_b32") and pw & c.r: n = max(n, 1)
        if c.kind == "valu" and ("dpp" in c.op or "row_" in c.mods or "quad_perm" in c.mods) and pw & c.r: n = max(n, 2)
        if ps:
            if c.kind == "valu" and ps & c.r:
                n = max(n, 4 if c.base in ("v_readlane_b32", "v_writelane_b32") else 2)
            if c.kind == "vmem" and ps & c.r: n = max(n, 5)
            if c.kind == "salu" and ps & c.r: n = max(n, 1)
        if ("sdwa" in p.op or "op_sel" in p.mods) and not p.base.startswith("v_pk") and c.kind in ("valu",) and pw & (c.r | c.w): n = max(n, 1)
    if p.kind == "mfma":
        big = 12 if p.p == 8 else 8
        if c.kind == "valu" and p.w & (c.r | c.w): n = max(n, big)
        if c.kind in ("vmem", "ds") and p.w & (c.r | c.w): n = max(n, big)
        if c.kind == "mfma":
            if p.w & (c.A | c.B): n = max(n, big)
            if p.w & c.C:
                if not (p.w == c.C and p.p == c.p): n = max(n, big - 2)
                elif p.base != c.base: n = max(n, big - 2)
            elif p.w & c.w and p.p != c.p: n = max(n, big - 2)
        if c.kind == "valu" and p.C & c.w: n = max(n, 7 if p.p == 8 else 3)
    if p.kind == "vmem" and getattr(p, "wide", None):
        if c.kind in ("valu", "mfma") and p.wide & c.w: n = max(n, 2)
        elif p.wide & c.w: n = max(n, 1)
    if p.kind == "salu" and ("s", "m0") in p.w and c.kind == "vmem" and getattr(c, "lds", False): n = max(n, 1)
    return n

_cache = {}
def _parse(t):
    if t not in _cache: _cache[t] = Ins(t)
    return _cache[t]
def is_ins(l):
    l = l.strip()
    return l and not l.startswith(";") and not l.startswith(".") and not l.endswith(":")

def fix_hazards(lines, verbose=False):
    WIN = 14
    changed = True; total = 0
    out = list(lines)
    while changed:
        changed = False
        idx = [i for i, l in enumerate(out) if is_ins(l)]
        ins = {i: _parse(out[i]) for i in idx}
        labels = {l.strip()[:-1]: i for i, l in enumerate(out) if l.strip().endswith(":") and not l.strip().startswith(";")}
        pos = {i: k for k, i in enumerate(idx)}
        preds = {i: [] for i in idx}
        for k, i in enumerate(idx):
            I = ins[i]
            if k + 1 < len(idx) and I.op not in ("s_branch", "s_endpgm"):
                preds[idx[k + 1]].append(i)
            if I.op == "s_branch" or I.op.startswith("s_cbranch"):
                t = labels[I.ops[0]]
                nxt = next(j for j in idx if j > t)
                preds[nxt].append(i)
        for i in idx:
            c = ins[i]
            if c.op == "s_nop": continue
            worst = 0
            stack = [(p, 0) for p in preds[i]]
            seen = {}
            while stack:
                j, d = stack.pop()
                if d >= WIN or seen.get(j, 99) <= d: continue
                seen[j] = d
                n = need(ins[j], c)
                if n - d > worst: worst = n - d; who = j
                for p in preds[j]: stack.append((p, d + ins[j].states()))
            if worst > 0:
                if verbose: print(f"pad {worst}: [{out[who]}] -> [{out[i]}]")
                out.insert(i, f"s_nop {worst-1}")
                total += worst; changed = True
                break
    return out
```

```python
import sys, struct
from asmlib import *

NAME = "concat_heads__softmax_full_mha__sliding_local_dilated__prompt"
MB = 1 << 20
QF, KF, VF, OA, OB, FL = 0, 2*MB, 4*MB, 6*MB, 8*MB, 10*MB
F_E, F_KV, F_OB, F_OA = FL, FL + 4096, FL + 8192, FL + 12288
WS_BYTES = 11*MB
def f2u(x): return struct.unpack("<I", struct.pack("<f", x))[0]
LOG2E = 1.4426950408889634
CSC = f2u(0.25*LOG2E)
SLOT = 34816; XREG = 10240
OPT = dict(a.split("=") for a in sys.argv[1:] if "=" in a)
def opt(k, d): return type(d)(OPT.get(k, d))
sX, sW, sWS, sOUT = 24, 28, 32, 36
sWAVE = 40
sTB, sHG, sROT = 41, 42, 43
sH, sB = 44, 45
sTO, sCO = 46, 47
sC = 48
sTAG = 49
sW4 = 22
SPIN = 1 << 16
sc = "sc1"

STAMP = "-stamp" in sys.argv
LIGHT = "-light" in sys.argv
ST = 10*MB + 512*1024
def stamp(a, i):
    if STAMP: a(f"s_memtime s[94:95]\ns_waitcnt lgkmcnt(0)\nv_writelane_b32 v7, s94, {i}")
def rstamp(a, i):
    if STAMP or LIGHT: a(f"s_memrealtime s[94:95]\ns_waitcnt lgkmcnt(0)\nv_writelane_b32 v7, s94, {i}")
def stamp_flush(a):
    if not (STAMP or LIGHT): return
    if LIGHT: a("v_writelane_b32 v7, s4, 60\nv_writelane_b32 v7, s6, 61\nv_writelane_b32 v7, s98, 62\nv_writelane_b32 v7, s96, 0\ns_memtime s[94:95]\ns_waitcnt lgkmcnt(0)\nv_writelane_b32 v7, s94, 18\nv_writelane_b32 v7, s70, 19")
    a(f"""s_lshl_b32 s50, s2, 3
          s_add_u32 s50, s50, s{sWAVE}
          s_lshl_b32 s50, s50, 8
          s_add_u32 s50, s50, {ST}
          v_lshlrev_b32 v1, 2, v0
          buffer_store_dword v7, v1, s[{sWS}:{sWS+3}], s50 offen""")

def diag_hold(a, point):
    if OPT.get("hold") != point: return
    l = a.newlabel("L_hold")
    a.label(l)
    a(f"""s_memrealtime s[94:95]
          s_waitcnt lgkmcnt(0)
          s_sub_u32 s94, s94, s98
          s_cmp_lt_u32 s94, 10000
          s_cbranch_scc1 {l}""")

def srd(a, d, p, nbytes):
    a(f"s_mov_b32 s{d}, s{p}\ns_mov_b32 s{d+1}, s{p+1}\ns_mov_b32 s{d+2}, {nbytes}\ns_mov_b32 s{d+3}, 0x20000")

def entry(a):
    a(f"""s_load_dwordx16 s[4:19], s[0:1], 0
          s_load_dwordx2 s[20:21], s[0:1], 64
          s_cmp_ge_u32 s2, 256
          s_cbranch_scc1 L_end""")
    if STAMP or LIGHT or "hold" in OPT: a("s_memtime s[96:97]\ns_memrealtime s[98:99]\nv_mov_b32 v7, 0")
    if opt("cpf", 1):
        a(f"""s_getpc_b64 s[56:57]
              L_pc:
              s_and_b32 s50, s2, 0xf8
              s_lshl_b32 s50, s50, 7
              v_lshl_add_u32 v1, v0, 1, s50
              v_min_u32 v1, L_code_end-L_pc-4, v1
              s_mov_b64 exec, 1
              global_load_dword v159, v1, s[56:57]
              s_mov_b64 exec, -1""")
    a(f"""v_readfirstlane_b32 s{sWAVE}, v0
          v_and_b32 v0, 63, v0
          s_lshr_b32 s{sB}, s2, 5
          s_bfe_u32 s53, s2, 0x20003
          s_and_b32 s54, s2, 6
          s_lshl2_add_u32 s{sTB}, s54, s{sB}
          s_and_b32 s54, s2, 1
          s_lshl2_add_u32 s{sHG}, s54, s53
          s_lshr_b32 s{sWAVE}, s{sWAVE}, 6
          s_and_b32 s{sW4}, s{sWAVE}, 3""")
def ids(a):
    a(f"""s_and_b32 s50, s2, 7
          s_bfe_u32 s53, s2, 0x20003
          s_lshl2_add_u32 s{sH}, s50, s53
          s_lshr_b32 s55, s2, 6
          s_lshl2_add_u32 s{sTO}, s50, s55
          s_bfe_u32 s{sCO}, s2, 0x30003
          s_mov_b32 s{sC}, {CSC:#x}
          v_lshlrev_b32 v14, 4, v0""")

def ws_setup(a):
    srd(a, sWS, 20, WS_BYTES)
    a(f"""s_add_u32 s68, s20, {FL}
          s_addc_u32 s69, s21, 0""")
def epoch_load(a):
    ws_setup(a)
    a(f"s_load_dword s{sTAG}, s[68:69], 0")
def epoch_tag(a):
    a(f"""s_waitcnt lgkmcnt(0)
          s_mul_i32 s{sTAG}, s{sTAG}, 0x9e3779b1
          s_add_u32 s{sTAG}, s{sTAG}, 0x7f4a7c15""")
def flag_store(a, soff):
    a(f"""v_mov_b32 v1, 0
          v_mov_b32 v2, s{sTAG}
          s_mov_b64 exec, 1
          buffer_store_dword v2, v1, s[{sWS}:{sWS+3}], s{soff} offen {sc}
          s_mov_b64 exec, -1""")

ACC = 32
aQ = lambda i: ACC + 4*i
aK = lambda i: ACC + 16 + 4*(i+1)
aV = lambda i: ACC + 36 + 4*(i+1)
F0, F1 = 88, 120
fX = lambda F, i: F + 4*(i+1)
fW = lambda F, seg: F + 20 + 4*seg

def kv_flag_load(a):
    a(f"""s_add_u32 s50, s{sWAVE}, s{sB}
          s_and_b32 s50, s50, 7
          s_lshl_b32 s50, s50, 4
          s_lshl_b32 s51, s{sH}, 7
          s_add_u32 s51, s51, {F_KV - FL}
          s_add_u32 s53, s50, s51
          s_lshl_b32 s50, s{sB}, 2
          s_lshr_b32 s52, s{sWAVE}, 1
          s_add_u32 s50, s50, s52
          s_lshl_b32 s50, s50, 2
          s_add_u32 s50, s50, s51
          s_load_dwordx4 s[80:83], s[68:69], s53
          s_load_dword s84, s[68:69], s50""")
def vpoll(a, lab, vdst, voff, soff):
    a("s_mov_b32 s70, 0")
    a.label(lab)
    a(f"""buffer_load_dword v{vdst}, v{voff}, s[{sWS}:{sWS+3}], {'0' if soff is None else f's{soff}'} offen {sc}
          s_add_u32 s70, s70, 1
          s_cmp_gt_u32 s70, {SPIN}
          s_waitcnt vmcnt(0)
          v_cmp_ne_u32 vcc, s{sTAG}, v{vdst}
          s_cbranch_scc1 {lab}_x
          s_nop 0
          s_cbranch_vccnz {lab}""")
    a.label(lab + "_x")
def kv_flag_check(a, late):
    a(f"""s_waitcnt lgkmcnt(0)
          s_xor_b32 s80, s80, s{sTAG}
          s_xor_b32 s81, s81, s{sTAG}
          s_xor_b32 s82, s82, s{sTAG}
          s_xor_b32 s83, s83, s{sTAG}
          s_xor_b32 s84, s84, s{sTAG}
          s_or_b64 s[80:81], s[80:81], s[82:83]
          s_or_b32 s80, s80, s81
          s_or_b32 s80, s80, s84
          s_cbranch_scc1 {late}""")
def kv_vpoll(a, tag):
    a(f"""v_and_b32 v1, 31, v0
          v_lshlrev_b32 v1, 2, v1
          s_lshl_b32 s80, s{sH}, 7
          s_add_u32 s80, s80, {F_KV}""")
    vpoll(a, f"L_kvp_{tag}", 2, 1, 80)
    if STAMP: a("v_writelane_b32 v7, s70, 20")

def loader(a):
    a(f"""s_lshl1_add_u32 s61, s53, s{sB}
          s_and_b32 s61, s61, 7
          v_lshrrev_b32 v1, 3, v0
          s_and_b32 s51, s{sWAVE}, 1
          s_lshl_b32 s52, s51, 2
          v_lshrrev_b32 v3, 4, v0
          v_and_b32 v2, 7, v0
          v_xor_b32 v2, s52, v2
          v_xor_b32 v4, v3, v2
          v_lshlrev_b32 v4, 4, v4
          v_lshl_add_u32 v4, v1, 10, v4
          s_lshl3_add_u32 s54, s{sTB}, s{sWAVE}
          s_lshl_b32 s54, s54, 13
          v_add_u32 v8, s54, v4
          v_and_b32 v3, 2, v1
          v_xor_b32 v2, v3, v2
          v_mul_u32_u24 v5, 3072, v1
          v_lshl_add_u32 v5, v2, 4, v5
          s_mul_i32 s58, s{sWAVE}, 3072
          s_lshl_b32 s54, s{sHG}, 7
          s_lshl3_add_u32 s54, s58, s54
          v_add_u32 v10, s54, v5
          s_lshl_b32 s56, s{sWAVE}, 10
          s_addk_i32 s56, 2048
          s_addk_i32 s58, {XREG}
          s_mov_b32 s59, 0
          s_mov_b32 s60, 0
          s_mov_b32 s{sX+2}, {2*MB}
          s_mov_b32 s{sX+3}, 0x20000
          s_mov_b32 s{sW+2}, {512*3072}
          s_mov_b32 s{sW+3}, 0x20000
          s_waitcnt lgkmcnt(0)
          s_mov_b64 s[{sX}:{sX+1}], s[4:5]
          s_mov_b64 s[{sW}:{sW+1}], s[6:7]""")
    if STAMP: a("v_writelane_b32 v7, s96, 0\nv_writelane_b32 v7, s98, 62")
    def prep():
        a(f"""s_lshl_b32 s62, s61, 7
              s_mul_i32 s63, s61, {64*3072}
              s_add_u32 s64, s62, 32768
              s_add_u32 s65, s63, {32*3072}
              s_add_u32 m0, s60, s56""")
    def issue(halo, tag):
        a(f"""buffer_load_dwordx4 v8, s[{sX}:{sX+3}], s62 offen lds
              s_add_u32 m0, m0, 4096""")
        if STAMP: a("s_memtime s[94:95]")
        a(f"""s_add_u32 s66, s60, s58
              buffer_load_dwordx4 v8, s[{sX}:{sX+3}], s64 offen lds""")
        if halo:
            a(f"""s_add_u32 m0, s60, s57
                  s_cmp_ge_u32 s{sW4}, 2
                  s_cbranch_scc1 L_nohalo_{tag}
                  buffer_load_dwordx4 v9, s[{sX}:{sX+3}], s62 offen lds""")
            a.label(f"L_nohalo_{tag}")
        a(f"""s_mov_b32 m0, s66
              s_add_u32 s61, s61, 1
              buffer_load_dwordx4 v10, s[{sW}:{sW+3}], s63 offen lds
              buffer_load_dwordx4 v10, s[{sW}:{sW+3}], s63 offen offset:1024 lds
              buffer_load_dwordx4 v10, s[{sW}:{sW+3}], s63 offen offset:2048 lds""")
        if STAMP: a("s_add_u32 m0, s59, 32\ns_waitcnt lgkmcnt(0)\nv_writelane_b32 v7, s94, m0")
        a(f"""s_add_u32 m0, s66, 12288
              s_and_b32 s61, s61, 7
              s_add_u32 s60, s60, {SLOT}
              s_cmp_eq_u32 s60, {4*SLOT}
              s_cselect_b32 s60, 0, s60
              s_add_u32 s59, s59, 1
              buffer_load_dwordx4 v10, s[{sW}:{sW+3}], s65 offen lds
              buffer_load_dwordx4 v10, s[{sW}:{sW+3}], s65 offen offset:1024 lds
              buffer_load_dwordx4 v10, s[{sW}:{sW+3}], s65 offen offset:2048 lds""")
    def wait2(n8, n9):
        l = a.newlabel("L_w")
        a(f"""s_cmp_ge_u32 s{sW4}, 2
              s_cbranch_scc1 {l}
              s_waitcnt vmcnt({n9})
              s_branch {l}_j""")
        a.label(l); a(f"s_waitcnt vmcnt({n8})"); a.label(l + "_j")
    a.label("L_ldA")
    prep()
    a("""s_cmp_lt_u32 s59, 3
         s_cbranch_scc1 L_ldA_go
         s_waitcnt vmcnt(16)
         s_barrier""")
    a.label("L_ldA_go")
    issue(False, "")
    a(f"""s_cmp_lt_u32 s59, 8
          s_cbranch_scc1 L_ldA
          s_mov_b64 s[{sX}:{sX+1}], s[10:11]
          s_mov_b64 s[{sW}:{sW+1}], s[12:13]
          s_lshl_b32 s53, s{sTB}, 16
          s_max_u32 s53, s53, 16384
          s_sub_u32 s53, s53, 16384
          s_lshl_b32 s57, s51, 10
          s_lshl3_add_u32 s53, s57, s53
          v_add_u32 v9, s53, v4""")
    epoch_load(a)
    prep()
    a("s_waitcnt vmcnt(16)\ns_barrier")
    issue(True, "b0")
    wait2(16, 17); a("s_barrier")
    ids(a)
    v_const_init(a, range(192, 256))
    epoch_tag(a)
    wait2(8, 9); a("s_barrier")
    early_setup(a)
    a("s_barrier")
    a.label("L_ldB")
    prep()
    a("""s_cmp_lt_u32 s59, 10
         s_cbranch_scc1 L_ldB_go""")
    wait2(8, 9)
    a("s_barrier")
    a.label("L_ldB_go")
    a("""s_cmp_eq_u32 s59, 15
         s_cbranch_scc0 L_ldB_nf""")
    kv_flag_load(a)
    a.label("L_ldB_nf")
    issue(True, "b1")
    a(f"""s_cmp_lt_u32 s59, 16
          s_cbranch_scc1 L_ldB""")
    wait2(8, 9); a("s_barrier")
    stamp(a, 48)
    kv_flag_check(a, "L_ld_late")
    for l in att_load_list()[:12]: a(l)
    a("s_waitcnt vmcnt(8)\ns_barrier")
    stamp(a, 49)
    a("s_branch L_ld_rest")
    a.label("L_ld_late")
    a("s_waitcnt vmcnt(0)\ns_barrier")
    kv_vpoll(a, "l")
    for l in att_load_list()[:12]: a(l)
    a.label("L_ld_rest")
    for l in att_load_list()[12:]: a(l)
    stamp(a, 50)

def mf(seg, F, i):
    if seg == 0: return f"v_mfma_f32_16x16x32_bf16 {vr(aQ(i),4)}, {vr(fW(F,0),4)}, {vr(fX(F,i),4)}, {vr(aQ(i),4)}"
    if seg == 1: return f"v_mfma_f32_16x16x32_bf16 {vr(aK(i),4)}, {vr(fW(F,1),4)}, {vr(fX(F,i),4)}, {vr(aK(i),4)}"
    return f"v_mfma_f32_16x16x32_bf16 {vr(aV(i),4)}, {vr(fX(F,i),4)}, {vr(fW(F,2),4)}, {vr(aV(i),4)}"
def rdW(F, s, seg): return [f"ds_read_b64_tr_b16 {vr(fW(F,seg)+2*jj,2)}, v13 offset:{XREG + s*12288 + seg*1024 + jj*512}" for jj in range(2)]
def rdX(F, s, i): return [f"ds_read_b128 {vr(fX(F,i),4)}, v{11+s} offset:{(i+1)*2048}"]
def gemm_mfmas(F, halo):
    T = list(range(-1 if halo else 0, 4))
    return [mf(seg, F, i) for i in T for seg in range(3) if not (seg == 0 and i < 0)]

def gemm_init(a, halo):
    a("v_mov_b32 v2, 0\nv_mov_b32 v3, 0")
    for r in (32, 48, 64, 72, 120, 136):
        a(f"v_mfma_f32_32x32x8_bf16 {vr(r,16)}, v[2:3], v[2:3], 0")
    a("s_nop 11")
def gemm_addr(a):
    return [f"v_add_u32 v11, s60, v8", f"v_add_u32 v12, s60, v9", f"v_add_u32 v13, s60, v10",
            f"s_add_u32 s60, s60, {SLOT}", f"s_cmp_eq_u32 s60, {4*SLOT}", "s_cselect_b32 s60, 0, s60"]
def gemm_loop(a, halo, tag, before_tail=None, side=None):
    T = list(range(-1 if halo else 0, 4))
    a("s_mov_b32 s59, 0")
    a.label(f"L_g_{tag}")
    a("s_barrier")
    M1 = [(0, i) for i in T if i >= 0] + [(1, i) for i in T] + [(2, i) for i in T]
    first = T[0]
    R0 = rdW(F0, 0, 1) + rdX(F0, 0, first) + rdW(F0, 0, 2) + rdW(F0, 0, 0)
    for i in T[1:]: R0 += rdX(F0, 0, i)
    order = []
    pend = list(R0)
    for k, (seg, i) in enumerate(M1):
        a(mf(seg, F1, i))
        if (seg, i) == (0, 3): pend += rdW(F1, 1, 0)
        if (seg, i) == (1, 3): pend += rdW(F1, 1, 1)
        if seg == 2: pend += rdX(F1, 1, i)
        if (seg, i) == (2, 3): pend += rdW(F1, 1, 2)
        n = opt("rpg", 2) if k < len(M1)-1 else 99
        while pend and n:
            r = pend.pop(0); a(r); order.append(r); n -= 1
    fill = gemm_addr(a) + ["s_add_u32 s59, s59, 1"]
    lastn = 99
    for i in T:
        for seg in (1, 2, 0):
            if seg == 0 and i < 0: continue
            need = rdW(F0, 0, seg) + rdX(F0, 0, i)
            n = min(15, len(order) - 1 - max(order.index(r) for r in need))
            if n < lastn: a(f"s_waitcnt lgkmcnt({n})"); lastn = n
            a(mf(seg, F0, i))
            if i >= 1 and fill: a(fill.pop(0))
    for f in fill: a(f)
    if side: side(a)
    a(f"""s_cmp_lt_u32 s59, 8
          s_waitcnt lgkmcnt(0)
          s_cbranch_scc1 L_g_{tag}""")
    if before_tail: before_tail(a)
    for m in gemm_mfmas(F1, halo): a(m)

def cvt2(a, d, s):
    a(f"v_cvt_pk_bf16_f32 v{d}, v{s}, v{s+1}\nv_cvt_pk_bf16_f32 v{d+1}, v{s+2}, v{s+3}")

def consumer(a):
    ids(a)
    a("s_waitcnt lgkmcnt(0)")
    if STAMP: a("v_writelane_b32 v7, s96, 0\nv_writelane_b32 v7, s98, 62")
    ws_setup(a)
    local_masks(a)
    a(f"""v_and_b32 v1, 15, v0
          v_lshrrev_b32 v2, 4, v0
          v_lshrrev_b32 v3, 1, v1
          v_xor_b32 v3, v3, v2
          v_lshlrev_b32 v3, 4, v3
          v_lshl_add_u32 v8, v1, 7, v3
          v_xor_b32 v9, 64, v8
          v_bfe_u32 v4, v0, 2, 2
          v_lshrrev_b32 v5, 1, v4
          v_and_b32 v6, 1, v2
          v_lshl_add_u32 v5, v6, 1, v5
          v_xor_b32 v5, s{sW4}, v5
          v_lshlrev_b32 v5, 5, v5
          v_lshl_add_u32 v5, v4, 7, v5
          v_and_b32 v6, 3, v0
          v_lshl_add_u32 v5, v6, 3, v5
          v_mul_u32_u24 v6, 3072, v2
          v_add_u32 v10, v5, v6
          s_mov_b32 s60, 0""")
    for l in gemm_addr(a): a(l)
    v_const_init(a, range(192, 256))
    early_setup(a)
    gemm_init(a, False)
    stamp(a, 1)
    diag_hold(a, "c0")
    gemm_loop(a, False, "A")
    stamp(a, 2)
    a(f"""v_mov_b32 v1, {F_E}
          buffer_load_dword v160, v1, s[{sWS}:{sWS+3}], 0 offen""")
    a(f"""s_lshl_b32 s50, s{sHG}, 2
          s_add_u32 s50, s50, s{sW4}
          s_lshl_b32 s51, s50, 16
          s_lshl_b32 s52, s{sTB}, 11
          s_add_u32 s51, s51, s52
          s_add_u32 s52, s51, {KF}
          s_add_u32 s53, s51, {VF}
          s_lshl_b32 s54, s50, 7
          s_lshl_b32 s55, s{sTB}, 2
          s_add_u32 s54, s54, s55
          s_add_u32 s54, s54, {F_KV}""")
    P = F0
    for (acc, so, scale, base) in ((aK, 52, False, P), (aV, 53, False, P+8), (aQ, 51, True, P+16)):
        if scale:
            for r in range(aQ(0), aQ(0)+16): a(f"v_mul_f32 v{r}, s{sC}, v{r}")
        for i in range(4): cvt2(a, base+2*i, acc(i))
        for pr in range(2):
            b = base + 4*pr
            a(f"v_permlane16_swap_b32 v{b}, v{b+2}\nv_permlane16_swap_b32 v{b+1}, v{b+3}")
        for pr in range(2):
            a(f"buffer_store_dwordx4 {vr(base+4*pr,4)}, v14, s[{sWS}:{sWS+3}], s{so} offen offset:{pr*1024} {sc}")
    a("s_barrier")
    stamp(a, 3)
    gemm_init(a, True)
    diag_hold(a, "a1")
    def side(a):
        a(f"""s_cmp_eq_u32 s59, {opt("kvf", 2)}
              s_cbranch_scc0 L_nokvf
              s_waitcnt vmcnt(0)
              v_readfirstlane_b32 s{sTAG}, v160
              s_mul_i32 s{sTAG}, s{sTAG}, 0x9e3779b1
              s_add_u32 s{sTAG}, s{sTAG}, 0x7f4a7c15""")
        flag_store(a, 54)
        stamp(a, 4)
        a.label("L_nokvf")
    gemm_loop(a, True, "B", kv_flag_load, side)
    a("s_setprio 3")
    stamp(a, 5)
    local_attn(a)
    stamp(a, 6)

class Weave:
    def __init__(self, a, groups, gap): self.a, self.g, self.gap, self.n = a, list(groups), gap, 0
    def __call__(self, s):
        for l in s.split("\n"):
            if not l.strip(): continue
            self.a(l); self.n += 1
            if self.n % self.gap == 0 and self.g:
                for x in self.g.pop(0): self.a(x)
    def flush(self):
        for g in self.g:
            for x in g: self.a(x)
        self.g = []

def local_attn(a):
    pQ = lambda i: 88 + 2*i
    pK = lambda i: 96 + 2*(i+1)
    pV = lambda i: 106 + 2*(i+1)
    Sx = lambda i: 120 + 8*i
    for i in range(-1, 4): cvt2(a, pK(i), aK(i))
    for i in range(4): cvt2(a, pQ(i), aQ(i))
    for i in range(4):
        a(f"v_mfma_f32_16x16x16_bf16 {vr(Sx(i),4)}, {vr(pK(i-1),2)}, {vr(pQ(i),2)}, {vr(24 if i==0 else 20,4)}")
        a(f"v_mfma_f32_16x16x16_bf16 {vr(Sx(i)+4,4)}, {vr(pK(i),2)}, {vr(pQ(i),2)}, v[16:19]")
    for i in range(-1, 4): cvt2(a, pV(i), aV(i))
    kv_flag_check(a, "L_c_late")
    a.label("L_c_ok")
    a0 = a
    a = Weave(a0, att_load_groups(), opt("lgap", 8))
    M = lambda i: 32 + i
    Tm = lambda i: 36 + i
    for i in range(4):
        s = Sx(i)
        a(f"v_max3_f32 v{M(i)}, v{s}, v{s+1}, v{s+2}\nv_max3_f32 v{Tm(i)}, v{s+3}, v{s+4}, v{s+5}")
    for i in range(4):
        s = Sx(i)
        a(f"v_max3_f32 v{M(i)}, v{M(i)}, v{s+6}, v{s+7}")
    for i in range(4): a(f"v_max_f32 v{M(i)}, v{M(i)}, v{Tm(i)}")
    for sw in ("v_permlane32_swap_b32", "v_permlane16_swap_b32"):
        for i in range(4): a(f"v_mov_b32 v{Tm(i)}, v{M(i)}")
        for i in range(4): a(f"{sw} v{M(i)}, v{Tm(i)}")
        for i in range(4): a(f"v_max_f32 v{M(i)}, v{M(i)}, v{Tm(i)}")
    for i in range(4): a(f"v_mul_f32 v{M(i)}, s{sC}, v{M(i)}")
    pP = lambda i: 40 + 4*i
    oO = lambda i: 56 + 4*i
    oL = lambda i: 72 + 4*i
    for i in range(4):
        s = Sx(i)
        for r in range(8): a(f"v_fma_f32 v{s+r}, v{s+r}, s{sC}, -v{M(i)}")
        for r in range(8): a(f"v_exp_f32 v{s+r}, v{s+r}")
        cvt2(a, pP(i), s); cvt2(a, pP(i)+2, s+4)
        if i > 0:
            a(f"v_mfma_f32_16x16x32_bf16 {vr(oL(i-1),4)}, v[28:31], {vr(pP(i-1),4)}, 0")
            a(f"v_mfma_f32_16x16x32_bf16 {vr(oO(i-1),4)}, {vr(pV(i-2),4)}, {vr(pP(i-1),4)}, 0")
    a(f"v_mfma_f32_16x16x32_bf16 {vr(oL(3),4)}, v[28:31], {vr(pP(3),4)}, 0")
    a(f"v_mfma_f32_16x16x32_bf16 {vr(oO(3),4)}, {vr(pV(2),4)}, {vr(pP(3),4)}, 0")
    a(f"""s_lshl_b32 s50, s{sHG}, 2
          s_add_u32 s50, s50, s{sW4}
          s_lshl_b32 s52, s50, 2
          s_lshl_b32 s50, s50, 10
          s_lshl_b32 s51, s{sTB}, 16
          s_add_u32 s50, s50, s51
          s_add_u32 s50, s50, {OB}
          s_add_u32 s51, s50, 32768
          s_lshl_b32 s53, s{sTB}, 7
          s_add_u32 s52, s52, s53
          s_add_u32 s23, s52, {F_OB}""")
    for i in range(4):
        a(f"v_rcp_f32 v{oL(i)}, v{oL(i)}")
    for i in range(4):
        for r in range(4): a(f"v_mul_f32 v{oO(i)+r}, v{oL(i)}, v{oO(i)+r}")
        cvt2(a, 128+2*i, oO(i))
    for pr in range(2):
        b = 128 + 4*pr
        a(f"v_permlane16_swap_b32 v{b}, v{b+2}\nv_permlane16_swap_b32 v{b+1}, v{b+3}")
    a.flush()

def local_masks(a):
    NEG = f2u(-1e30)
    a(f"""v_and_b32 v1, 15, v0
          v_lshrrev_b32 v2, 4, v0
          v_lshlrev_b32 v2, 2, v2
          v_sub_u32 v1, v1, v2
          v_mov_b32 v3, {NEG:#x}
          s_cmp_eq_u32 s{sTB}, 0
          s_cselect_b64 s[52:53], -1, 0""")
    for r in range(4):
        a(f"""v_subrev_u32 v4, {r}, v1
              v_and_b32 v5, -15, v4
              v_cmp_eq_u32 vcc, 0, v5
              v_add_u32 v4, 16, v4
              v_and_b32 v5, -15, v4
              v_cndmask_b32 v{16+r}, v3, 0, vcc
              v_cmp_eq_u32 vcc, 0, v5
              v_mov_b32 v{28+r}, 0x3f803f80
              v_cndmask_b32 v{20+r}, v3, 0, vcc
              v_cndmask_b32 v{24+r}, v{20+r}, v3, s[52:53]""")

S0, S1, O0, O1, CC = 32, 48, 64, 80, 96
Qr = (116, 112); NM = (120, 122); AC = 124; ZZ = 126; IDX = 31
KR = lambda t: 160 + 4*t
VR = lambda t, blk: 192 + 8*t + 4*blk
L_XA, L_XB, L_XL = 0, 8192, 16384
L_M = L_XL + 4
L_Q = 24576
L_WO = 32768
LDS_BYTES = L_WO + 131072

def v_const_init(a, regs):
    a(f"""v_and_b32 v1, 27, v0
          v_cmp_eq_u32 vcc, 16, v1
          v_mov_b32 v2, 0x3f803f80
          v_cndmask_b32 v2, 0, v2, vcc""")
    for r in regs: a(f"v_mov_b32 v{r}, v2")

def att_load_setup(a):
    a(f"""s_add_u32 s72, s{sWAVE}, s{sB}
          s_and_b32 s72, s72, 7
          s_lshl_b32 s72, s72, 13
          s_lshl_b32 s77, s{sH}, 16
          s_add_u32 s72, s72, s77
          s_add_u32 s74, s72, {VF}
          s_add_u32 s72, s72, {KF}
          s_add_u32 s73, s72, 4096
          s_add_u32 s75, s74, 4096
          s_lshl_b32 s76, s{sB}, 3
          s_add_u32 s76, s76, s{sWAVE}
          s_lshl_b32 s76, s76, 10
          s_add_u32 s76, s76, s77
          v_and_b32 v15, 0x2f0, v14
          s_mov_b32 s78, 0xffff
          s_mov_b32 s79, 0xffff""")
def att_load_list():
    L = [f"buffer_load_dwordx4 {vr(Qr[0],4)}, v14, s[{sWS}:{sWS+3}], s76 offen {sc}"]
    for t in range(8):
        L.append(f"buffer_load_dwordx4 {vr(KR(t),4)}, v14, s[{sWS}:{sWS+3}], s{72+t//4} offen offset:{(t%4)*1024} {sc}")
        L.append("s_mov_b64 exec, s[78:79]")
        for blk in range(2):
            L.append(f"buffer_load_dwordx4 {vr(VR(t,blk),4)}, v15, s[{sWS}:{sWS+3}], s{74+t//4} offen offset:{(t%4)*1024+blk*256} {sc}")
        L.append("s_mov_b64 exec, -1")
    return L
def att_load_groups():
    L = att_load_list()
    G = [[L[0]]]
    for t in range(8):
        G.append([L[1+5*t]]); G.append(L[2+5*t:6+5*t])
    return G

def max16(a, S, d, t):
    a(f"""v_max3_f32 v{d}, v{S}, v{S+1}, v{S+2}
          v_max3_f32 v{t}, v{S+3}, v{S+4}, v{S+5}
          v_max3_f32 v{d}, v{d}, v{S+6}, v{S+7}
          v_max3_f32 v{t}, v{t}, v{S+8}, v{S+9}
          v_max3_f32 v{d}, v{d}, v{S+10}, v{S+11}
          v_max3_f32 v{t}, v{t}, v{S+12}, v{S+13}
          v_max3_f32 v{d}, v{d}, v{S+14}, v{S+15}
          v_max_f32 v{d}, v{d}, v{t}""")

def qk(S, t, q): return f"v_mfma_f32_32x32x16_bf16 {vr(S,16)}, {vr(KR(t),4)}, {vr(q,4)}, {vr(CC,16)}"
def pv(O, t, blk, S): return f"v_smfmac_f32_32x32x32_bf16 {vr(O,16)}, {vr(VR(t,blk),4)}, {vr(S+8*blk,8)}, v{IDX}"
def zero16(O): return f"v_mfma_f32_32x32x8_bf16 {vr(O,16)}, {vr(ZZ,2)}, {vr(ZZ,2)}, 0"
def cset(p): return f"v_mfma_f32_32x32x8_bf16 {vr(CC,16)}, {vr(AC,2)}, {vr(NM[p],2)}, 0"

AD = lambda k: 20 + (k & 7)
def att_step(a, n):
    p = n & 1
    O, Op = (O0, O1) if p == 0 else (O1, O0)
    TB_ = opt("tbar", 5)
    PR = opt("prio", 1)
    for t in range(8):
        Sa, Sb = (S0, S1) if t % 2 == 0 else (S1, S0)
        extra = {}
        def ex(i, s): extra.setdefault(i, []).append(s)
        if t > 0: ex(1, pv(O, t-1, 1, Sb))
        elif n > 0: ex(1, pv(Op, 7, 1, Sb))
        if n == 0: ex(4, f"s_waitcnt vmcnt({max(0, 20-3*t)})")
        if t < 7: ex(4, qk(Sb, t+1, Qr[p]))
        elif n < 7: ex(4, qk(Sb, 0, Qr[1-p]))
        ex(10, pv(O, t, 0, Sa))
        if t == 1 and n > 0:
            ex(0, f"ds_write_b128 v{AD(2*n)}, {vr(Op,4)} offset:{L_XA}")
            ex(2, f"ds_write_b128 v{AD(2*n)}, {vr(Op+4,4)} offset:{L_XB}")
            ex(3, f"ds_write_b32 v{AD(2*n)}, v{Op+8} offset:{L_XL}")
        if t == TB_:
            if n == 5: ex(7, "s_waitcnt vmcnt(1) lgkmcnt(0)")
            else: ex(7, "s_waitcnt lgkmcnt(0)")
            ex(7, "s_barrier")
            if PR: ex(7, "s_setprio 3")
            if n < 7:
                ex(7, f"ds_read_b32 v{NM[1-p]}, v{AD(n+1)} offset:{L_M}")
                ex(8, f"ds_read_b128 {vr(Qr[1-p],4)}, v{AD(n+1)} offset:{L_Q}")
            if n > 0:
                k = 2*n+2 if n < 7 else 2*n+1
                ex(9, f"ds_read_b128 {vr(Op,4)}, v{AD(k)} offset:{L_XA}")
                ex(11, f"ds_read_b128 {vr(Op+4,4)}, v{AD(k)} offset:{L_XB}")
                ex(12, f"ds_read_b32 v{Op+8}, v{AD(k)} offset:{L_XL}")
        if PR:
            pp = [int(x) for x in OPT.get("pp", "64,107,121").split(",")]
            for lvl, q in zip((2, 1, 0), pp):
                z = (TB_*16 + 7 + q) % 128
                if t == z // 16 and (n > 0 or t > TB_): ex(z % 16, f"s_setprio {lvl}")
            if n == 7 and t == 6: ex(12, "s_setprio 2")
            if n == 7 and t == 7: ex(6, "s_setprio 1")
        if t == 6 and n < 7:
            ex(6, "s_waitcnt lgkmcnt(0)")
            ex(7, cset(1-p))
        if n == 1 and t == 0:
            ex(6, f"""s_cmp_lt_u32 s{sWAVE}, 4
                      s_cbranch_scc1 L_nost
                      buffer_store_dwordx4 v[128:131], v14, s[{sWS}:{sWS+3}], s50 offen {sc}
                      buffer_store_dwordx4 v[132:135], v14, s[{sWS}:{sWS+3}], s51 offen {sc}
                      L_nost:""")
            for r in range(4): ex(8+r, f"v_mov_b32 v{136+r}, -1")
            ex(13, f"buffer_store_dwordx4 v[136:139], v14, s[{sWS}:{sWS+3}], s71 offen {sc}")
        if n == 2 and t == 0:
            ex(5, f"v_mov_b32 v2, s{sTAG}")
            ex(6, f"""s_cmp_lt_u32 s{sWAVE}, 4
                      s_waitcnt vmcnt(4)
                      s_mov_b64 exec, 1
                      buffer_store_dword v2, v{ZZ}, s[{sWS}:{sWS+3}], s3 offen {sc}
                      s_cbranch_scc1 L_nofl
                      buffer_store_dword v2, v{ZZ}, s[{sWS}:{sWS+3}], s23 offen {sc}
                      L_nofl:
                      s_mov_b64 exec, -1""")
        if 1 <= n <= 4 and t % 2 == 1:
            j = (n-1)*4 + t//2
            ex(12, f"s_xor_b32 s52, s85, {(j % 8)*65536}")
            ex(13, f"buffer_load_dwordx4 v13, s[{sW}:{sW+3}], s52 offen lds")
            ex(14, "s_add_u32 m0, m0, 8192")
            if j == 7: ex(15, f"s_mov_b64 s[{sW}:{sW+1}], s[8:9]")
        if n == 5 and t == 3:
            ex(13, f"buffer_load_dword v19, v18, s[{sWS}:{sWS+3}], 0 offen {sc}")
        if n == 6 and t == 2:
            ex(12, "s_waitcnt vmcnt(0)")
            ex(13, f"""v_cmp_ne_u32 vcc, s{sTAG}, v19
                       s_nop 1
                       s_cbranch_vccnz L_ob_late
                       L_ob_ok:""")
        if (n == 6 and t >= 3) or (n == 7 and t < 3):
            j = t - 3 if n == 6 else t + 5
            ex(13, op_oload(0, j))
        if n == 7:
            if t == 0: ex(2, "\n".join(op_waddr(0)))
            slots = [5, 6, 8, 9, 11, 12, 14, 15]
            for i, l in zip(slots, WPRE[t]): ex(i, l)
        for i in range(16):
            a(f"v_exp_f32 v{Sa+i}, v{Sa+i}")
            for s in extra.get(i, []): a(s)

FK, FV = 84, 88
def att_fallback(a):
    a(f"""s_lshl_b32 s51, s{sH}, 16
          s_add_u32 s52, s51, {KF}
          s_add_u32 s54, s51, {VF}
          s_add_u32 s55, s52, 65536
          ds_read_b128 {vr(Qr[0],4)}, v{AD(7)} offset:{L_Q}
          v_mov_b32 v3, 0xff800000
          s_mov_b32 s53, s52""")
    v_const_init(a, range(FV, FV+8))
    a.label("L_fb1")
    a(f"""buffer_load_dwordx4 {vr(FK,4)}, v14, s[{sWS}:{sWS+3}], s53 offen sc1
          s_add_u32 s53, s53, 1024
          s_waitcnt vmcnt(0) lgkmcnt(0)
          v_mfma_f32_32x32x16_bf16 {vr(S0,16)}, {vr(FK,4)}, {vr(Qr[0],4)}, 0""")
    max16(a, S0, 4, 5)
    a(f"""v_max_f32 v3, v3, v4
          s_cmp_lt_u32 s53, s55
          s_cbranch_scc1 L_fb1
          v_mov_b32 v4, v3
          v_permlane32_swap_b32 v3, v4
          v_max_f32 v3, v3, v4""")
    for r in range(16): a(f"v_sub_f32 v{CC+r}, 0, v3\nv_mov_b32 v{O0+r}, 0")
    a.label("L_fb2")
    a(f"""buffer_load_dwordx4 {vr(FK,4)}, v14, s[{sWS}:{sWS+3}], s52 offen sc1
          s_mov_b64 exec, s[78:79]
          buffer_load_dwordx4 {vr(FV,4)}, v15, s[{sWS}:{sWS+3}], s54 offen sc1
          buffer_load_dwordx4 {vr(FV+4,4)}, v15, s[{sWS}:{sWS+3}], s54 offen offset:256 sc1
          s_mov_b64 exec, -1
          s_add_u32 s52, s52, 1024
          s_add_u32 s54, s54, 1024
          s_waitcnt vmcnt(0)""")
    a(f"v_mfma_f32_32x32x16_bf16 {vr(S0,16)}, {vr(FK,4)}, {vr(Qr[0],4)}, {vr(CC,16)}")
    for i in range(16): a(f"v_exp_f32 v{S0+i}, v{S0+i}")
    for blk in range(2): a(f"v_smfmac_f32_32x32x32_bf16 {vr(O0,16)}, {vr(FV+4*blk,4)}, {vr(S0+8*blk,8)}, v{IDX}")
    a(f"""s_cmp_lt_u32 s52, s55
          s_nop 7
          s_nop 7
          s_cbranch_scc1 L_fb2
          s_branch L_att_ok""")

def phase_att(a):
    srd(a, sW, 14, 512*1024)
    a(f"""s_mov_b32 m0, s67
          v_mov_b32 v13, v152
          v_mov_b32 v8, v153
          v_mov_b32 v9, v154
          v_mov_b32 v10, v155
          v_mov_b32 v18, v156
          v_mov_b32 v{AC}, v157
          v_mov_b32 v{AD(0)}, v158
          v_mov_b32 v{IDX}, 0xdddd
          v_mov_b32 v{ZZ}, 0
          v_mov_b32 v{ZZ+1}, 0
          v_mov_b32 v{NM[0]+1}, 0
          v_mov_b32 v{NM[1]+1}, 0
          v_mov_b32 v{AC+1}, 0""")
    a(zero16(O0)); a(zero16(O1))
    a("""s_mov_b32 s52, 0
         s_waitcnt vmcnt(23)""")
    stamp(a, 8)
    a(f"""v_mfma_f32_32x32x16_bf16 {vr(S0,16)}, {vr(KR(0),4)}, {vr(Qr[0],4)}, 0
          ds_write_b128 v{AD(0)}, {vr(Qr[0],4)} offset:{L_Q}""")
    for k in range(1, 4): a(f"v_add_u32 v{AD(k)}, {k*1024}, v{AD(0)}\nv_and_b32 v{AD(k)}, 0x1fff, v{AD(k)}")
    for k in range(4): a(f"v_xor_b32 v{AD(k+4)}, 0x1000, v{AD(k)}")
    max16(a, S0, 3, 4)
    a(f"""v_mov_b32 v4, v3
          v_permlane32_swap_b32 v3, v4
          v_max_f32 v3, v3, v4
          v_cvt_pk_bf16_f32 v{NM[0]}, -v3, 0
          ds_write_b32 v{AD(0)}, v{NM[0]} offset:{L_M}""")
    a(cset(0))
    a(qk(S0, 0, Qr[0]))
    stamp(a, 9)
    if LIGHT: a("s_memrealtime s[4:5]")
    diag_hold(a, "att0")
    for n in range(8):
        att_step(a, n)
        if n < 7: stamp(a, 24+n)
    a(pv(O1, 7, 1, S1))
    stamp(a, 10)
    if LIGHT: a("s_memrealtime s[6:7]")
    diag_hold(a, "att1")
    a(f"""s_mov_b32 s60, {f2u(2.0**-60):#x}
          s_mov_b32 s61, {f2u(2.0**100):#x}
          s_waitcnt lgkmcnt(0)""")
    for r in (8, 0, 1, 2, 3, 4, 5, 6, 7): a(f"v_add_f32 v{O0+r}, v{O0+r}, v{O1+r}")
    a(f"""v_add_f32 v3, abs(v{O0}), abs(v{O0+1})
          v_add_f32 v4, abs(v{O0+2}), abs(v{O0+3})
          v_add_f32 v5, abs(v{O0+4}), abs(v{O0+5})
          v_add_f32 v6, abs(v{O0+6}), abs(v{O0+7})
          v_add_f32 v3, v3, v4
          v_add_f32 v5, v5, v6
          v_cmp_lt_f32 s[52:53], s60, v{O0+8}
          v_add_f32 v3, v3, v{O0+8}
          v_add_f32 v3, v3, v5
          v_cmp_gt_f32 vcc, s61, v3
          s_and_b64 vcc, vcc, s[52:53]
          s_cmp_eq_u64 vcc, -1
          s_cbranch_scc0 L_fallback""")
    a.label("L_att_ok")
    a(f"v_rcp_f32 v3, v{O0+8}")
    for r in range(8): a(f"v_mul_f32 v{O0+r}, v3, v{O0+r}")
    cvt2(a, 112, O0); cvt2(a, 114, O0+4)
    for r in range(112, 116): a(f"v_min_u32 v{r}, -2, v{r}")
    a(f"""v_permlane32_swap_b32 v112, v114
          v_permlane32_swap_b32 v113, v115
          buffer_store_dwordx4 v[112:115], v14, s[{sWS}:{sWS+3}], s71 offen {sc}
          s_setprio 0""")
    stamp(a, 11)

sOS = 86
def early_setup(a):
    att_load_setup(a)
    srd(a, sOUT, 16, 2048*2048)
    a(f"""v_lshrrev_b32 v1, 3, v0
          v_and_b32 v2, 7, v0
          v_bfe_u32 v3, v1, 1, 1
          s_and_b32 s52, s{sWAVE}, 1
          s_lshl_b32 s52, s52, 1
          v_add_u32 v3, s52, v3
          v_lshlrev_b32 v3, 1, v3
          v_xor_b32 v3, v3, v2
          v_lshlrev_b32 v3, 4, v3
          v_lshl_add_u32 v3, v1, 10, v3
          s_and_b32 s55, s{sCO}, 1
          s_lshl_b32 s53, s55, 2
          s_xor_b32 s52, s{sWAVE}, s53
          s_lshl_b32 s52, s52, 13
          s_lshl_b32 s53, s{sCO}, 7
          s_add_u32 s52, s52, s53
          v_add_u32 v152, s52, v3
          s_lshl_b32 s52, s{sWAVE}, 10
          s_add_u32 s67, s52, {L_WO}
          v_add_u32 v158, s52, v14
          s_lshr_b32 s85, s{sCO}, 1
          s_lshl_b32 s53, s55, 2
          s_add_u32 s85, s85, s53
          s_lshl_b32 s85, s85, 16""")
    a(f"""v_lshrrev_b32 v2, 4, v0
          v_bfe_u32 v4, v0, 2, 2
          v_lshrrev_b32 v5, 1, v4
          v_and_b32 v6, 1, v2
          v_lshl_add_u32 v5, v6, 1, v5
          v_lshlrev_b32 v5, 5, v5
          v_lshl_add_u32 v5, v4, 7, v5
          v_and_b32 v6, 3, v0
          v_lshl_add_u32 v5, v6, 3, v5
          v_lshl_add_u32 v5, v2, 10, v5
          s_lshr_b32 s54, s{sWAVE}, 2
          s_lshl_b32 s52, s54, 15
          s_add_u32 s52, s52, {L_WO}
          v_add_u32 v153, s52, v5
          s_xor_b32 s55, s55, s54
          v_and_b32 v1, 15, v0
          v_lshlrev_b32 v5, 4, v1
          v_lshl_add_u32 v5, v2, 9, v5
          s_lshl_b32 s52, s{sTO}, 1
          s_lshr_b32 s53, s{sW4}, 1
          s_add_u32 s52, s52, s53
          s_lshl_b32 s52, s52, 15
          s_and_b32 s53, s{sW4}, 1
          s_lshl_b32 s53, s53, 8
          s_add_u32 s52, s52, s53
          s_lshl_b32 s53, s55, 14
          s_add_u32 s52, s52, s53
          s_add_u32 s52, s52, {OB}
          v_add_u32 v154, s52, v5
          v_and_b32 v5, 1, v2
          v_lshlrev_b32 v5, 5, v5
          v_lshrrev_b32 v6, 1, v2
          v_lshl_add_u32 v5, v6, 4, v5
          v_lshl_add_u32 v5, v1, 11, v5
          s_lshl_b32 s52, s{sTO}, 17
          s_lshl_b32 s53, s{sW4}, 15
          s_add_u32 s52, s52, s53
          s_lshl_b32 s53, s{sCO}, 7
          s_add_u32 s52, s52, s53
          s_lshl_b32 s53, s54, 6
          s_add_u32 s52, s52, s53
          v_add_u32 v155, s52, v5
          s_lshl_b32 s52, s{sTO}, 7
          s_lshl_b32 s53, s55, 6
          s_add_u32 s52, s52, s53
          s_add_u32 s52, s52, {F_OB}
          v_lshl_add_u32 v156, v1, 2, s52
          s_lshr_b32 s53, s{sW4}, 1
          s_add_u32 s53, s53, s{sTO}
          s_lshl_b32 s53, s53, 7
          s_add_u32 s53, s53, {F_OA - F_OB}
          v_and_b32 v5, 1, v2
          v_mul_u32_u24 v5, s53, v5
          v_add_u32 v156, v156, v5
          v_cmp_gt_u32 vcc, 32, v0
          v_mov_b32 v2, 0x3f80
          s_lshl_b32 s{sOS}, s{sCO}, 11
          v_cndmask_b32 v157, 0, v2, vcc""")
    for k in range(1, 8): a(f"s_xor_b32 s{sOS+k}, s{sOS}, {k*2048}")
    a(f"""s_add_u32 s52, s{sWAVE}, 7
          s_and_b32 s52, s52, 7
          s_lshl_b32 s71, s{sB}, 3
          s_add_u32 s71, s71, s52
          s_lshl_b32 s3, s71, 7
          s_lshl2_add_u32 s3, s{sH}, s3
          s_add_u32 s3, s3, {F_OA}
          s_lshl_b32 s71, s71, 15
          s_lshl_b32 s52, s{sH}, 10
          s_add_u32 s71, s71, s52
          s_add_u32 s71, s71, {OA}""")

_wf = [KR(0), KR(1)]
for _t in range(1, 7): _wf += [KR(_t+1), VR(_t-1, 0), VR(_t-1, 1)]
_wf += [VR(6, 0), VR(6, 1), VR(7, 0), VR(7, 1)] + [S0 + 4*i for i in range(8)]
def WF(s, ct): return _wf[4*s + ct]
OF = lambda br, s: (64 if br else 128) + 4*s
PA = lambda br, ct: (112 if br else 96) + 4*ct
WA = (28, 29, 30, 17)
def op_waddr(br):
    return [f"v_add_u32 v{WA[0]}, {br*65536}, v8" if br else f"v_mov_b32 v{WA[0]}, v8"] + [f"v_xor_b32 v{WA[ct]}, {ct*32}, v{WA[0]}" for ct in range(1, 4)]
def op_wreads(s):
    return [f"ds_read_b64_tr_b16 {vr(WF(s,ct)+2*jj,2)}, v{WA[ct]} offset:{s*4096 + jj*512}" for ct in range(4) for jj in range(2)]
_all = [l for _s in range(8) for l in op_wreads(_s)]
WPRE = [_all[0:4]] + [_all[4+6*k:10+6*k] for k in range(6)] + [_all[40:44]]
WREST = _all[44:]
def op_oload(br, s):
    return f"buffer_load_dwordx4 {vr(OF(br,s),4)}, v9, s[{sWS}:{sWS+3}], s{sOS+s} offen {sc}"
def op_mfmas(br, s, first):
    return [f"v_mfma_f32_16x16x32_bf16 {vr(PA(br,ct),4)}, {vr(WF(s,ct),4)}, {vr(OF(br,s),4)}, {0 if first else vr(PA(br,ct),4)}" for ct in range(4)]

def op_send(a, br):
    o0, o1 = (L_XA, L_XB) if br == 0 else (L_WO, L_WO + 8192)
    lab = a.newlabel("L_op")
    a(f"""s_cmp_ge_u32 s{sWAVE}, 4
          s_cbranch_scc1 {lab}_hi
          ds_write_b128 v{AD(7)}, {vr(PA(br,2),4)} offset:{o0}
          ds_write_b128 v{AD(7)}, {vr(PA(br,3),4)} offset:{o1}
          s_branch {lab}_j""")
    a.label(f"{lab}_hi")
    a(f"""ds_write_b128 v{AD(7)}, {vr(PA(br,0),4)} offset:{o0}
          ds_write_b128 v{AD(7)}, {vr(PA(br,1),4)} offset:{o1}""")
    for r in range(8): a(f"v_mov_b32 v{PA(br,0)+r}, v{PA(br,2)+r}")
    a.label(f"{lab}_j")
def op_read(a, br):
    o0, o1 = (L_XA, L_XB) if br == 0 else (L_WO, L_WO + 8192)
    a(f"""ds_read_b128 {vr(PA(br,2),4)}, v{AD(3)} offset:{o0}
          ds_read_b128 {vr(PA(br,3),4)}, v{AD(3)} offset:{o1}""")
def op_sum(a, br):
    d = PA(br, 2)
    for r in range(8): a(f"v_add_f32 v{PA(br,0)+r}, v{PA(br,0)+r}, v{PA(br,2)+r}")
    cvt2(a, d, PA(br,0)); cvt2(a, d+2, PA(br,1))
    a(f"""v_permlane16_swap_b32 v{d}, v{d+2}
          v_permlane16_swap_b32 v{d+1}, v{d+3}""")
def op_store(a, br):
    a(f"buffer_store_dwordx4 {vr(PA(br,2),4)}, v10, s[{sOUT}:{sOUT+3}], 0 offen offset:{0 if br else 1024} " + OPT.get("ost" + "BA"[br], "").replace("+", " "))

def oa_check(a, s, bad):
    o = OF(1, s)
    a(f"""v_max3_u32 v3, v{o}, v{o+1}, v{o+2}
          v_max_u32 v3, v3, v{o+3}
          v_cmp_eq_u32 vcc, -1, v3
          s_nop 1
          s_cbranch_vccnz {bad}""")

def phase_out(a):
    a(f"v_subrev_u32 v9, {OB-OA}, v9\ns_waitcnt vmcnt(1)")
    order = []
    pend = [("B", l) for l in WREST]
    switched = [False]
    def drain(n):
        while pend and n:
            br, l = pend.pop(0)
            if br == "A" and not switched[0]:
                for x in op_waddr(1): a(x)
                switched[0] = True
            a(l); order.append((br, l)); n -= 1
    def need(br, s):
        k = max(order.index((br, l)) for l in op_wreads(s) if (br, l) in order)
        return min(15, len(order) - 1 - k)
    for s in range(8):
        if s >= 5: a(f"s_waitcnt lgkmcnt({need('B', s)})")
        for ct, m in enumerate(op_mfmas(0, s, s == 0)):
            a(m)
            pend += [("A", l) for l in op_wreads(s)[2*ct:2*ct+2]]
            drain(opt("trd", 2))
        if s == opt("opos", 5):
            for k in range(8): a(op_oload(1, k))
    stamp(a, 12)
    for r in range(16):
        a(f"v_mov_b32 v{PA(1,0)+r}, 0"); drain(2)
    drain(99)
    op_send(a, 0)
    a("s_mov_b32 s52, 0\ns_mov_b32 s70, 0\ns_waitcnt lgkmcnt(0)")
    if opt("tb1", 1):
        a("s_barrier"); op_read(a, 0)
    stamp(a, 14)
    for s in range(8):
        a(f"s_waitcnt vmcnt({7-s})")
        oa_check(a, s, f"L_oa_bad{s}")
        for m in op_mfmas(1, s, False): a(m)
        a.label(f"L_oa_nx{s}")
    stamp(a, 15)
    a("s_cmp_lg_u32 s52, 0\ns_cbranch_scc1 L_oa_retry")
    a.label("L_oa_done")
    stamp(a, 17)
    if opt("tb1", 1):
        a("s_waitcnt lgkmcnt(0)")
        op_sum(a, 0)
        op_send(a, 1)
        op_store(a, 0)
        a("s_waitcnt lgkmcnt(0)\ns_barrier")
        op_read(a, 1)
        a("s_waitcnt lgkmcnt(0)")
        op_sum(a, 1)
        op_store(a, 1)
    a(f"""s_or_b32 s50, s2, s{sWAVE}
          s_cbranch_scc1 L_noepoch
          s_mov_b32 s50, {F_E}""")
    flag_store(a, 50)
    a.label("L_noepoch")
    diag_hold(a, "end")
    stamp(a, 18); rstamp(a, 63)
    if STAMP: a("v_writelane_b32 v7, s70, 19")
    stamp_flush(a)

def oa_retry(a):
    for s in range(8):
        a.label(f"L_oa_bad{s}")
        a(f"s_or_b32 s52, s52, {1<<s}\ns_branch L_oa_nx{s}")
    a.label("L_oa_retry")
    for s in range(8):
        a(f"s_bitcmp1_b32 s52, {s}\ns_cbranch_scc0 L_oa_i{s}")
        a(op_oload(1, s))
        a.label(f"L_oa_i{s}")
    a(f"""s_add_u32 s70, s70, 1
          s_cmp_gt_u32 s70, {SPIN}
          s_waitcnt vmcnt(0)
          s_cbranch_scc1 L_oa_done""")
    for s in range(8):
        a(f"s_bitcmp1_b32 s52, {s}\ns_cbranch_scc0 L_oa_c{s}")
        oa_check(a, s, f"L_oa_c{s}")
        for m in op_mfmas(1, s, False): a(m)
        a(f"s_and_b32 s52, s52, {0xff ^ (1<<s)}")
        a.label(f"L_oa_c{s}")
    a("""s_cmp_lg_u32 s52, 0
         s_cbranch_scc1 L_oa_retry
         s_branch L_oa_done""")

HEAD = open("cdna_kernels/" + NAME + ".s.ref").read().split("; Override launch")[0]
def build(path):
    a = Asm()
    entry(a)
    a(f"""s_cmp_ge_u32 s{sWAVE}, 4
          s_cbranch_scc1 L_consumer""")
    loader(a)
    a("s_branch L_qkv_done")
    a.label("L_consumer")
    consumer(a)
    a.label("L_qkv_done")
    phase_att(a)
    phase_out(a)
    a.label("L_end")
    a("s_endpgm")
    oa_retry(a)
    a.label("L_c_late")
    kv_vpoll(a, "c")
    a("s_branch L_c_ok")
    a.label("L_ob_late")
    vpoll(a, "L_ob_poll", 19, 18, None)
    a("s_branch L_ob_ok")
    a.label("L_fallback")
    att_fallback(a)
    a.label("L_code_end")
    a("s_endpgm")
    n = NAME + "_kernel"
    out = [HEAD.rstrip(), f"; @launch grid=(256,1,1) block=(512,1,1) lds={LDS_BYTES}",
           '.amdgcn_target "amdgcn-amd-amdhsa--gfx950"\n.text', f".globl {n}\n.p2align 12\n.p2align 8\n.type {n},@function\n{n}:"]
    for l in fix_hazards(a.lines, verbose="-v" in sys.argv):
        out.append(l if l.endswith(":") else "    " + l)
    out.append(f""".section .rodata,"a"
.p2align 6
.amdhsa_kernel {n}
  .amdhsa_next_free_vgpr 256
  .amdhsa_next_free_sgpr 100
  .amdhsa_accum_offset 256
  .amdhsa_group_segment_fixed_size 0
  .amdhsa_kernarg_size 72
  .amdhsa_user_sgpr_count 2
  .amdhsa_user_sgpr_kernarg_segment_ptr 1
  .amdhsa_system_sgpr_workgroup_id_x 1
.end_amdhsa_kernel
""")
    open(path, "w").write("\n".join(out))

if __name__ == "__main__":
    build(OPT.get("out", "stamp.s" if STAMP else "fused.s"))
```

```python
import sys, struct
from asmlib import *

NAME = "concat_heads__softmax_full_mha__sliding_local_dilated__prompt"
MB = 1 << 20
QF, KF, VF, OA, OB, FL = 0, 2*MB, 4*MB, 6*MB, 8*MB, 10*MB
F_E, F_KV, F_OB, F_OA = FL, FL + 4096, FL + 8192, FL + 12288
WS_BYTES = 11*MB
def f2u(x): return struct.unpack("<I", struct.pack("<f", x))[0]
LOG2E = 1.4426950408889634
CSC = f2u(0.25*LOG2E)
SLOT = 34816; XREG = 10240
OPT = dict(a.split("=") for a in sys.argv[1:] if "=" in a)
def opt(k, d): return type(d)(OPT.get(k, d))
sX, sW, sWS, sOUT = 24, 28, 32, 36
sWAVE = 40
sTB, sHG, sROT = 41, 42, 43
sH, sB = 44, 45
sTO, sCO = 46, 47
sC = 48
sTAG = 49
sW4 = 22
SPIN = 1 << 16
sc = "sc1"

STAMP = "-stamp" in sys.argv
LIGHT = "-light" in sys.argv
ST = 10*MB + 512*1024
def stamp(a, i):
    if STAMP: a(f"s_memtime s[94:95]\ns_waitcnt lgkmcnt(0)\nv_writelane_b32 v7, s94, {i}")
def rstamp(a, i):
    if STAMP or LIGHT: a(f"s_memrealtime s[94:95]\ns_waitcnt lgkmcnt(0)\nv_writelane_b32 v7, s94, {i}")
def stamp_flush(a):
    if not (STAMP or LIGHT): return
    if LIGHT: a("v_writelane_b32 v7, s4, 60\nv_writelane_b32 v7, s6, 61\nv_writelane_b32 v7, s98, 62\nv_writelane_b32 v7, s96, 0\ns_memtime s[94:95]\ns_waitcnt lgkmcnt(0)\nv_writelane_b32 v7, s94, 18\nv_writelane_b32 v7, s70, 19")
    a(f"""s_lshl_b32 s50, s2, 3
          s_add_u32 s50, s50, s{sWAVE}
          s_lshl_b32 s50, s50, 8
          s_add_u32 s50, s50, {ST}
          v_lshlrev_b32 v1, 2, v0
          buffer_store_dword v7, v1, s[{sWS}:{sWS+3}], s50 offen""")

def diag_hold(a, point):
    if OPT.get("hold") != point: return
    l = a.newlabel("L_hold")
    a.label(l)
    a(f"""s_memrealtime s[94:95]
          s_waitcnt lgkmcnt(0)
          s_sub_u32 s94, s94, s98
          s_cmp_lt_u32 s94, 10000
          s_cbranch_scc1 {l}""")

def srd(a, d, p, nbytes):
    a(f"s_mov_b32 s{d}, s{p}\ns_mov_b32 s{d+1}, s{p+1}\ns_mov_b32 s{d+2}, {nbytes}\ns_mov_b32 s{d+3}, 0x20000")

def entry(a):
    a(f"""s_load_dwordx16 s[4:19], s[0:1], 0
          s_load_dwordx2 s[20:21], s[0:1], 64
          s_cmp_ge_u32 s2, 256
          s_cbranch_scc1 L_end""")
    if STAMP or LIGHT or "hold" in OPT: a("s_memtime s[96:97]\ns_memrealtime s[98:99]\nv_mov_b32 v7, 0")
    if opt("cpf", 1):
        a(f"""s_getpc_b64 s[56:57]
              L_pc:
              s_and_b32 s50, s2, 0xf8
              s_lshl_b32 s50, s50, 7
              v_lshl_add_u32 v1, v0, 1, s50
              v_min_u32 v1, L_code_end-L_pc-4, v1
              s_mov_b64 exec, 1
              global_load_dword v159, v1, s[56:57]
              s_mov_b64 exec, -1""")
    a(f"""v_readfirstlane_b32 s{sWAVE}, v0
          v_and_b32 v0, 63, v0
          s_lshr_b32 s{sB}, s2, 5
          s_bfe_u32 s53, s2, 0x20003
          s_and_b32 s54, s2, 6
          s_lshl2_add_u32 s{sTB}, s54, s{sB}
          s_and_b32 s54, s2, 1
          s_lshl2_add_u32 s{sHG}, s54, s53
          s_lshr_b32 s{sWAVE}, s{sWAVE}, 6
          s_and_b32 s{sW4}, s{sWAVE}, 3""")
def ids(a):
    a(f"""s_and_b32 s50, s2, 7
          s_bfe_u32 s53, s2, 0x20003
          s_lshl2_add_u32 s{sH}, s50, s53
          s_lshr_b32 s55, s2, 6
          s_lshl2_add_u32 s{sTO}, s50, s55
          s_bfe_u32 s{sCO}, s2, 0x30003
          s_mov_b32 s{sC}, {CSC:#x}
          v_lshlrev_b32 v14, 4, v0""")

def ws_setup(a):
    srd(a, sWS, 20, WS_BYTES)
    a(f"""s_add_u32 s68, s20, {FL}
          s_addc_u32 s69, s21, 0""")
def epoch_load(a):
    ws_setup(a)
    a(f"s_load_dword s{sTAG}, s[68:69], 0")
def epoch_tag(a):
    a(f"""s_waitcnt lgkmcnt(0)
          s_mul_i32 s{sTAG}, s{sTAG}, 0x9e3779b1
          s_add_u32 s{sTAG}, s{sTAG}, 0x7f4a7c15""")
def flag_store(a, soff):
    a(f"""v_mov_b32 v1, 0
          v_mov_b32 v2, s{sTAG}
          s_mov_b64 exec, 1
          buffer_store_dword v2, v1, s[{sWS}:{sWS+3}], s{soff} offen {sc}
          s_mov_b64 exec, -1""")

ACC = 32
aQ = lambda i: ACC + 4*i
aK = lambda i: ACC + 16 + 4*(i+1)
aV = lambda i: ACC + 36 + 4*(i+1)
F0, F1 = 88, 120
fX = lambda F, i: F + 4*(i+1)
fW = lambda F, seg: F + 20 + 4*seg

def kv_flag_load(a):
    a(f"""s_add_u32 s50, s{sWAVE}, s{sB}
          s_and_b32 s50, s50, 7
          s_lshl_b32 s50, s50, 4
          s_lshl_b32 s51, s{sH}, 7
          s_add_u32 s51, s51, {F_KV - FL}
          s_add_u32 s53, s50, s51
          s_lshl_b32 s50, s{sB}, 2
          s_lshr_b32 s52, s{sWAVE}, 1
          s_add_u32 s50, s50, s52
          s_lshl_b32 s50, s50, 2
          s_add_u32 s50, s50, s51
          s_load_dwordx4 s[80:83], s[68:69], s53
          s_load_dword s84, s[68:69], s50""")
def vpoll(a, lab, vdst, voff, soff):
    a("s_mov_b32 s70, 0")
    a.label(lab)
    a(f"""buffer_load_dword v{vdst}, v{voff}, s[{sWS}:{sWS+3}], {'0' if soff is None else f's{soff}'} offen {sc}
          s_add_u32 s70, s70, 1
          s_cmp_gt_u32 s70, {SPIN}
          s_waitcnt vmcnt(0)
          v_cmp_ne_u32 vcc, s{sTAG}, v{vdst}
          s_cbranch_scc1 {lab}_x
          s_nop 0
          s_cbranch_vccnz {lab}""")
    a.label(lab + "_x")
def kv_flag_check(a, late):
    a(f"""s_waitcnt lgkmcnt(0)
          s_xor_b32 s80, s80, s{sTAG}
          s_xor_b32 s81, s81, s{sTAG}
          s_xor_b32 s82, s82, s{sTAG}
          s_xor_b32 s83, s83, s{sTAG}
          s_xor_b32 s84, s84, s{sTAG}
          s_or_b64 s[80:81], s[80:81], s[82:83]
          s_or_b32 s80, s80, s81
          s_or_b32 s80, s80, s84
          s_cbranch_scc1 {late}""")
def kv_vpoll(a, tag):
    a(f"""v_and_b32 v1, 31, v0
          v_lshlrev_b32 v1, 2, v1
          s_lshl_b32 s80, s{sH}, 7
          s_add_u32 s80, s80, {F_KV}""")
    vpoll(a, f"L_kvp_{tag}", 2, 1, 80)
    if STAMP: a("v_writelane_b32 v7, s70, 20")

def loader(a):
    if "rot" in OPT:
        ra, rb = [int(x) for x in OPT["rot"].split(",")]
        a(f"s_mul_i32 s61, s{sB}, {ra}\ns_mul_i32 s54, s53, {rb}\ns_add_u32 s61, s61, s54\ns_lshr_b32 s61, s61, 1")
    else: a(f"s_lshl1_add_u32 s61, s53, s{sB}")
    a(f"""s_and_b32 s61, s61, 7
          v_lshrrev_b32 v1, 3, v0
          s_and_b32 s51, s{sWAVE}, 1
          s_lshl_b32 s52, s51, 2
          v_lshrrev_b32 v3, 4, v0
          v_and_b32 v2, 7, v0
          v_xor_b32 v2, s52, v2
          v_xor_b32 v4, v3, v2
          v_lshlrev_b32 v4, 4, v4
          v_lshl_add_u32 v4, v1, 10, v4
          s_lshl3_add_u32 s54, s{sTB}, s{sWAVE}
          s_lshl_b32 s54, s54, 13
          v_add_u32 v8, s54, v4
          v_and_b32 v3, 2, v1
          v_xor_b32 v2, v3, v2
          v_mul_u32_u24 v5, 3072, v1
          v_lshl_add_u32 v5, v2, 4, v5
          s_mul_i32 s58, s{sWAVE}, 3072
          s_lshl_b32 s54, s{sHG}, 7
          s_lshl3_add_u32 s54, s58, s54
          v_add_u32 v10, s54, v5
          s_lshl_b32 s56, s{sWAVE}, 10
          s_addk_i32 s56, 2048
          s_addk_i32 s58, {XREG}
          s_mov_b32 s59, 0
          s_mov_b32 s60, 0
          s_mov_b32 s{sX+2}, {2*MB}
          s_mov_b32 s{sX+3}, 0x20000
          s_mov_b32 s{sW+2}, {512*3072}
          s_mov_b32 s{sW+3}, 0x20000
          s_waitcnt lgkmcnt(0)
          s_mov_b64 s[{sX}:{sX+1}], s[4:5]
          s_mov_b64 s[{sW}:{sW+1}], s[6:7]""")
    if STAMP: a("v_writelane_b32 v7, s96, 0\nv_writelane_b32 v7, s98, 62")
    def prep():
        a(f"""s_lshl_b32 s62, s61, 7
              s_mul_i32 s63, s61, {64*3072}
              s_add_u32 s64, s62, 32768
              s_add_u32 s65, s63, {32*3072}
              s_add_u32 m0, s60, s56""")
    def issue(halo, tag):
        a(f"""buffer_load_dwordx4 v8, s[{sX}:{sX+3}], s62 offen lds
              s_add_u32 m0, m0, 4096""")
        if STAMP: a("s_memtime s[94:95]")
        a(f"""s_add_u32 s66, s60, s58
              buffer_load_dwordx4 v8, s[{sX}:{sX+3}], s64 offen lds""")
        if halo:
            a(f"""s_add_u32 m0, s60, s57
                  s_cmp_ge_u32 s{sW4}, 2
                  s_cbranch_scc1 L_nohalo_{tag}
                  buffer_load_dwordx4 v9, s[{sX}:{sX+3}], s62 offen lds""")
            a.label(f"L_nohalo_{tag}")
        a(f"""s_mov_b32 m0, s66
              s_add_u32 s61, s61, 1
              buffer_load_dwordx4 v10, s[{sW}:{sW+3}], s63 offen lds
              buffer_load_dwordx4 v10, s[{sW}:{sW+3}], s63 offen offset:1024 lds
              buffer_load_dwordx4 v10, s[{sW}:{sW+3}], s63 offen offset:2048 lds""")
        if STAMP: a("s_add_u32 m0, s59, 32\ns_waitcnt lgkmcnt(0)\nv_writelane_b32 v7, s94, m0")
        a(f"""s_add_u32 m0, s66, 12288
              s_and_b32 s61, s61, 7
              s_add_u32 s60, s60, {SLOT}
              s_cmp_eq_u32 s60, {4*SLOT}
              s_cselect_b32 s60, 0, s60
              s_add_u32 s59, s59, 1
              buffer_load_dwordx4 v10, s[{sW}:{sW+3}], s65 offen lds
              buffer_load_dwordx4 v10, s[{sW}:{sW+3}], s65 offen offset:1024 lds
              buffer_load_dwordx4 v10, s[{sW}:{sW+3}], s65 offen offset:2048 lds""")
    def wait2(n8, n9):
        l = a.newlabel("L_w")
        a(f"""s_cmp_ge_u32 s{sW4}, 2
              s_cbranch_scc1 {l}
              s_waitcnt vmcnt({n9})
              s_branch {l}_j""")
        a.label(l); a(f"s_waitcnt vmcnt({n8})"); a.label(l + "_j")
    a.label("L_ldA")
    prep()
    a("""s_cmp_lt_u32 s59, 3
         s_cbranch_scc1 L_ldA_go
         s_waitcnt vmcnt(16)
         s_barrier""")
    a.label("L_ldA_go")
    issue(False, "")
    a(f"""s_cmp_lt_u32 s59, 8
          s_cbranch_scc1 L_ldA
          s_mov_b64 s[{sX}:{sX+1}], s[10:11]
          s_mov_b64 s[{sW}:{sW+1}], s[12:13]
          s_lshl_b32 s53, s{sTB}, 16
          s_max_u32 s53, s53, 16384
          s_sub_u32 s53, s53, 16384
          s_lshl_b32 s57, s51, 10
          s_lshl3_add_u32 s53, s57, s53
          v_add_u32 v9, s53, v4""")
    epoch_load(a)
    prep()
    a("s_waitcnt vmcnt(16)\ns_barrier")
    issue(True, "b0")
    wait2(16, 17); a("s_barrier")
    ids(a)
    v_const_init(a, range(192, 256))
    epoch_tag(a)
    wait2(8, 9); a("s_barrier")
    early_setup(a)
    a("s_barrier")
    a.label("L_ldB")
    prep()
    a("""s_cmp_lt_u32 s59, 10
         s_cbranch_scc1 L_ldB_go""")
    wait2(8, 9)
    a("s_barrier")
    a.label("L_ldB_go")
    a("""s_cmp_eq_u32 s59, 15
         s_cbranch_scc0 L_ldB_nf""")
    kv_flag_load(a)
    a.label("L_ldB_nf")
    issue(True, "b1")
    a(f"""s_cmp_lt_u32 s59, 16
          s_cbranch_scc1 L_ldB""")
    wait2(8, 9); a("s_barrier")
    stamp(a, 48)
    kv_flag_check(a, "L_ld_late")
    for l in att_load_list()[:12]: a(l)
    a("s_waitcnt vmcnt(8)\ns_barrier")
    stamp(a, 49)
    a("s_branch L_ld_rest")
    a.label("L_ld_late")
    a("s_waitcnt vmcnt(0)\ns_barrier")
    kv_vpoll(a, "l")
    for l in att_load_list()[:12]: a(l)
    a.label("L_ld_rest")
    for l in att_load_list()[12:]: a(l)
    stamp(a, 50)

def mf(seg, F, i):
    if seg == 0: return f"v_mfma_f32_16x16x32_bf16 {vr(aQ(i),4)}, {vr(fW(F,0),4)}, {vr(fX(F,i),4)}, {vr(aQ(i),4)}"
    if seg == 1: return f"v_mfma_f32_16x16x32_bf16 {vr(aK(i),4)}, {vr(fW(F,1),4)}, {vr(fX(F,i),4)}, {vr(aK(i),4)}"
    return f"v_mfma_f32_16x16x32_bf16 {vr(aV(i),4)}, {vr(fX(F,i),4)}, {vr(fW(F,2),4)}, {vr(aV(i),4)}"
def rdW(F, s, seg): return [f"ds_read_b64_tr_b16 {vr(fW(F,seg)+2*jj,2)}, v13 offset:{XREG + s*12288 + seg*1024 + jj*512}" for jj in range(2)]
def rdX(F, s, i): return [f"ds_read_b128 {vr(fX(F,i),4)}, v{11+s} offset:{(i+1)*2048}"]
def gemm_mfmas(F, halo):
    T = list(range(-1 if halo else 0, 4))
    return [mf(seg, F, i) for i in T for seg in range(3) if not (seg == 0 and i < 0)]

def gemm_init(a, halo):
    a("v_mov_b32 v2, 0\nv_mov_b32 v3, 0")
    for r in (32, 48, 64, 72, 120, 136):
        a(f"v_mfma_f32_32x32x8_bf16 {vr(r,16)}, v[2:3], v[2:3], 0")
    a("s_nop 11")
def gemm_addr(a):
    return [f"v_add_u32 v11, s60, v8", f"v_add_u32 v12, s60, v9", f"v_add_u32 v13, s60, v10",
            f"s_add_u32 s60, s60, {SLOT}", f"s_cmp_eq_u32 s60, {4*SLOT}", "s_cselect_b32 s60, 0, s60"]
def gemm_loop(a, halo, tag, before_tail=None, side=None):
    T = list(range(-1 if halo else 0, 4))
    a("s_mov_b32 s59, 0")
    a.label(f"L_g_{tag}")
    a("s_barrier")
    M1 = [(0, i) for i in T if i >= 0] + [(1, i) for i in T] + [(2, i) for i in T]
    first = T[0]
    R0 = rdW(F0, 0, 1) + rdX(F0, 0, first) + rdW(F0, 0, 2) + rdW(F0, 0, 0)
    for i in T[1:]: R0 += rdX(F0, 0, i)
    order = []
    pend = list(R0)
    for k, (seg, i) in enumerate(M1):
        a(mf(seg, F1, i))
        if (seg, i) == (0, 3): pend += rdW(F1, 1, 0)
        if (seg, i) == (1, 3): pend += rdW(F1, 1, 1)
        if seg == 2: pend += rdX(F1, 1, i)
        if (seg, i) == (2, 3): pend += rdW(F1, 1, 2)
        n = opt("rpg", 2) if k < len(M1)-1 else 99
        while pend and n:
            r = pend.pop(0); a(r); order.append(r); n -= 1
    fill = gemm_addr(a) + ["s_add_u32 s59, s59, 1"]
    lastn = 99
    for i in T:
        for seg in (1, 2, 0):
            if seg == 0 and i < 0: continue
            need = rdW(F0, 0, seg) + rdX(F0, 0, i)
            n = min(15, len(order) - 1 - max(order.index(r) for r in need))
            if n < lastn: a(f"s_waitcnt lgkmcnt({n})"); lastn = n
            a(mf(seg, F0, i))
            if i >= 1 and fill: a(fill.pop(0))
    for f in fill: a(f)
    if side: side(a)
    a(f"""s_cmp_lt_u32 s59, 8
          s_waitcnt lgkmcnt(0)
          s_cbranch_scc1 L_g_{tag}""")
    if before_tail: before_tail(a)
    for m in gemm_mfmas(F1, halo): a(m)

def cvt2(a, d, s):
    a(f"v_cvt_pk_bf16_f32 v{d}, v{s}, v{s+1}\nv_cvt_pk_bf16_f32 v{d+1}, v{s+2}, v{s+3}")

def consumer(a):
    ids(a)
    a("s_waitcnt lgkmcnt(0)")
    if STAMP: a("v_writelane_b32 v7, s96, 0\nv_writelane_b32 v7, s98, 62")
    ws_setup(a)
    local_masks(a)
    a(f"""v_and_b32 v1, 15, v0
          v_lshrrev_b32 v2, 4, v0
          v_lshrrev_b32 v3, 1, v1
          v_xor_b32 v3, v3, v2
          v_lshlrev_b32 v3, 4, v3
          v_lshl_add_u32 v8, v1, 7, v3
          v_xor_b32 v9, 64, v8
          v_bfe_u32 v4, v0, 2, 2
          v_lshrrev_b32 v5, 1, v4
          v_and_b32 v6, 1, v2
          v_lshl_add_u32 v5, v6, 1, v5
          v_xor_b32 v5, s{sW4}, v5
          v_lshlrev_b32 v5, 5, v5
          v_lshl_add_u32 v5, v4, 7, v5
          v_and_b32 v6, 3, v0
          v_lshl_add_u32 v5, v6, 3, v5
          v_mul_u32_u24 v6, 3072, v2
          v_add_u32 v10, v5, v6
          s_mov_b32 s60, 0""")
    for l in gemm_addr(a): a(l)
    v_const_init(a, range(192, 256))
    early_setup(a)
    gemm_init(a, False)
    stamp(a, 1)
    diag_hold(a, "c0")
    gemm_loop(a, False, "A")
    stamp(a, 2)
    a(f"""v_mov_b32 v1, {F_E}
          buffer_load_dword v160, v1, s[{sWS}:{sWS+3}], 0 offen""")
    a(f"""s_lshl_b32 s50, s{sHG}, 2
          s_add_u32 s50, s50, s{sW4}
          s_lshl_b32 s51, s50, 16
          s_lshl_b32 s52, s{sTB}, 11
          s_add_u32 s51, s51, s52
          s_add_u32 s52, s51, {KF}
          s_add_u32 s53, s51, {VF}
          s_lshl_b32 s54, s50, 7
          s_lshl_b32 s55, s{sTB}, 2
          s_add_u32 s54, s54, s55
          s_add_u32 s54, s54, {F_KV}""")
    P = F0
    for (acc, so, scale, base) in ((aK, 52, False, P), (aV, 53, False, P+8), (aQ, 51, True, P+16)):
        if scale:
            for r in range(aQ(0), aQ(0)+16): a(f"v_mul_f32 v{r}, s{sC}, v{r}")
        for i in range(4): cvt2(a, base+2*i, acc(i))
        for pr in range(2):
            b = base + 4*pr
            a(f"v_permlane16_swap_b32 v{b}, v{b+2}\nv_permlane16_swap_b32 v{b+1}, v{b+3}")
        for pr in range(2):
            a(f"buffer_store_dwordx4 {vr(base+4*pr,4)}, v14, s[{sWS}:{sWS+3}], s{so} offen offset:{pr*1024} {sc}")
    a("s_barrier")
    stamp(a, 3)
    gemm_init(a, True)
    diag_hold(a, "a1")
    def side(a):
        a(f"""s_cmp_eq_u32 s59, {opt("kvf", 2)}
              s_cbranch_scc0 L_nokvf
              s_waitcnt vmcnt(0)
              v_readfirstlane_b32 s{sTAG}, v160
              s_mul_i32 s{sTAG}, s{sTAG}, 0x9e3779b1
              s_add_u32 s{sTAG}, s{sTAG}, 0x7f4a7c15""")
        flag_store(a, 54)
        stamp(a, 4)
        a.label("L_nokvf")
    gemm_loop(a, True, "B", kv_flag_load, side)
    a("s_setprio 3")
    stamp(a, 5)
    local_attn(a)
    stamp(a, 6)

class Weave:
    def __init__(self, a, groups, gap): self.a, self.g, self.gap, self.n = a, list(groups), gap, 0
    def __call__(self, s):
        for l in s.split("\n"):
            if not l.strip(): continue
            self.a(l); self.n += 1
            if self.n % self.gap == 0 and self.g:
                for x in self.g.pop(0): self.a(x)
    def flush(self):
        for g in self.g:
            for x in g: self.a(x)
        self.g = []

def local_attn(a):
    pQ = lambda i: 88 + 2*i
    pK = lambda i: 96 + 2*(i+1)
    pV = lambda i: 106 + 2*(i+1)
    Sx = lambda i: 120 + 8*i
    for i in range(-1, 4): cvt2(a, pK(i), aK(i))
    for i in range(4): cvt2(a, pQ(i), aQ(i))
    for i in range(4):
        a(f"v_mfma_f32_16x16x16_bf16 {vr(Sx(i),4)}, {vr(pK(i-1),2)}, {vr(pQ(i),2)}, {vr(24 if i==0 else 20,4)}")
        a(f"v_mfma_f32_16x16x16_bf16 {vr(Sx(i)+4,4)}, {vr(pK(i),2)}, {vr(pQ(i),2)}, v[16:19]")
    for i in range(-1, 4): cvt2(a, pV(i), aV(i))
    kv_flag_check(a, "L_c_late")
    a.label("L_c_ok")
    a0 = a
    a = Weave(a0, att_load_groups(), opt("lgap", 8))
    M = lambda i: 32 + i
    Tm = lambda i: 36 + i
    for i in range(4):
        s = Sx(i)
        a(f"v_max3_f32 v{M(i)}, v{s}, v{s+1}, v{s+2}\nv_max3_f32 v{Tm(i)}, v{s+3}, v{s+4}, v{s+5}")
    for i in range(4):
        s = Sx(i)
        a(f"v_max3_f32 v{M(i)}, v{M(i)}, v{s+6}, v{s+7}")
    for i in range(4): a(f"v_max_f32 v{M(i)}, v{M(i)}, v{Tm(i)}")
    for sw in ("v_permlane32_swap_b32", "v_permlane16_swap_b32"):
        for i in range(4): a(f"v_mov_b32 v{Tm(i)}, v{M(i)}")
        for i in range(4): a(f"{sw} v{M(i)}, v{Tm(i)}")
        for i in range(4): a(f"v_max_f32 v{M(i)}, v{M(i)}, v{Tm(i)}")
    for i in range(4): a(f"v_mul_f32 v{M(i)}, s{sC}, v{M(i)}")
    pP = lambda i: 40 + 4*i
    oO = lambda i: 56 + 4*i
    oL = lambda i: 72 + 4*i
    for i in range(4):
        s = Sx(i)
        for r in range(8): a(f"v_fma_f32 v{s+r}, v{s+r}, s{sC}, -v{M(i)}")
        for r in range(8): a(f"v_exp_f32 v{s+r}, v{s+r}")
        cvt2(a, pP(i), s); cvt2(a, pP(i)+2, s+4)
        if i > 0:
            a(f"v_mfma_f32_16x16x32_bf16 {vr(oL(i-1),4)}, v[28:31], {vr(pP(i-1),4)}, 0")
            a(f"v_mfma_f32_16x16x32_bf16 {vr(oO(i-1),4)}, {vr(pV(i-2),4)}, {vr(pP(i-1),4)}, 0")
    a(f"v_mfma_f32_16x16x32_bf16 {vr(oL(3),4)}, v[28:31], {vr(pP(3),4)}, 0")
    a(f"v_mfma_f32_16x16x32_bf16 {vr(oO(3),4)}, {vr(pV(2),4)}, {vr(pP(3),4)}, 0")
    a(f"""s_lshl_b32 s50, s{sHG}, 2
          s_add_u32 s50, s50, s{sW4}
          s_lshl_b32 s52, s50, 2
          s_lshl_b32 s50, s50, 10
          s_lshl_b32 s51, s{sTB}, 16
          s_add_u32 s50, s50, s51
          s_add_u32 s50, s50, {OB}
          s_add_u32 s51, s50, 32768
          s_lshl_b32 s53, s{sTB}, 7
          s_add_u32 s52, s52, s53
          s_add_u32 s23, s52, {F_OB}""")
    for i in range(4):
        a(f"v_rcp_f32 v{oL(i)}, v{oL(i)}")
    for i in range(4):
        for r in range(4): a(f"v_mul_f32 v{oO(i)+r}, v{oL(i)}, v{oO(i)+r}")
        cvt2(a, 128+2*i, oO(i))
    for pr in range(2):
        b = 128 + 4*pr
        a(f"v_permlane16_swap_b32 v{b}, v{b+2}\nv_permlane16_swap_b32 v{b+1}, v{b+3}")
    a.flush()

def local_masks(a):
    NEG = f2u(-1e30)
    a(f"""v_and_b32 v1, 15, v0
          v_lshrrev_b32 v2, 4, v0
          v_lshlrev_b32 v2, 2, v2
          v_sub_u32 v1, v1, v2
          v_mov_b32 v3, {NEG:#x}
          s_cmp_eq_u32 s{sTB}, 0
          s_cselect_b64 s[52:53], -1, 0""")
    for r in range(4):
        a(f"""v_subrev_u32 v4, {r}, v1
              v_and_b32 v5, -15, v4
              v_cmp_eq_u32 vcc, 0, v5
              v_add_u32 v4, 16, v4
              v_and_b32 v5, -15, v4
              v_cndmask_b32 v{16+r}, v3, 0, vcc
              v_cmp_eq_u32 vcc, 0, v5
              v_mov_b32 v{28+r}, 0x3f803f80
              v_cndmask_b32 v{20+r}, v3, 0, vcc
              v_cndmask_b32 v{24+r}, v{20+r}, v3, s[52:53]""")

S0, S1, O0, O1, CC = 32, 48, 64, 80, 96
Qr = (116, 112); NM = (120, 122); AC = 124; ZZ = 126; IDX = 31
KR = lambda t: 160 + 4*t
VR = lambda t, blk: 192 + 8*t + 4*blk
L_XA, L_XB, L_XL = 0, 8192, 16384
L_M = L_XL + 4
L_Q = 24576
L_WO = 32768
LDS_BYTES = L_WO + 131072

def v_const_init(a, regs):
    a(f"""v_and_b32 v1, 27, v0
          v_cmp_eq_u32 vcc, 16, v1
          v_mov_b32 v2, 0x3f803f80
          v_cndmask_b32 v2, 0, v2, vcc""")
    for r in regs: a(f"v_mov_b32 v{r}, v2")

def att_load_setup(a):
    a(f"""s_add_u32 s72, s{sWAVE}, s{sB}
          s_and_b32 s72, s72, 7
          s_lshl_b32 s72, s72, 13
          s_lshl_b32 s77, s{sH}, 16
          s_add_u32 s72, s72, s77
          s_add_u32 s74, s72, {VF}
          s_add_u32 s72, s72, {KF}
          s_add_u32 s73, s72, 4096
          s_add_u32 s75, s74, 4096
          s_lshl_b32 s76, s{sB}, 3
          s_add_u32 s76, s76, s{sWAVE}
          s_lshl_b32 s76, s76, 10
          s_add_u32 s76, s76, s77
          v_and_b32 v15, 0x2f0, v14
          s_mov_b32 s78, 0xffff
          s_mov_b32 s79, 0xffff""")
def att_load_list():
    L = [f"buffer_load_dwordx4 {vr(Qr[0],4)}, v14, s[{sWS}:{sWS+3}], s76 offen {sc}"]
    for t in range(8):
        L.append(f"buffer_load_dwordx4 {vr(KR(t),4)}, v14, s[{sWS}:{sWS+3}], s{72+t//4} offen offset:{(t%4)*1024} {sc}")
        L.append("s_mov_b64 exec, s[78:79]")
        for blk in range(2):
            L.append(f"buffer_load_dwordx4 {vr(VR(t,blk),4)}, v15, s[{sWS}:{sWS+3}], s{74+t//4} offen offset:{(t%4)*1024+blk*256} {sc}")
        L.append("s_mov_b64 exec, -1")
    return L
def att_load_groups():
    L = att_load_list()
    G = [[L[0]]]
    for t in range(8):
        G.append([L[1+5*t]]); G.append(L[2+5*t:6+5*t])
    return G

def max16(a, S, d, t):
    a(f"""v_max3_f32 v{d}, v{S}, v{S+1}, v{S+2}
          v_max3_f32 v{t}, v{S+3}, v{S+4}, v{S+5}
          v_max3_f32 v{d}, v{d}, v{S+6}, v{S+7}
          v_max3_f32 v{t}, v{t}, v{S+8}, v{S+9}
          v_max3_f32 v{d}, v{d}, v{S+10}, v{S+11}
          v_max3_f32 v{t}, v{t}, v{S+12}, v{S+13}
          v_max3_f32 v{d}, v{d}, v{S+14}, v{S+15}
          v_max_f32 v{d}, v{d}, v{t}""")

def qk(S, t, q): return f"v_mfma_f32_32x32x16_bf16 {vr(S,16)}, {vr(KR(t),4)}, {vr(q,4)}, {vr(CC,16)}"
def pv(O, t, blk, S): return f"v_smfmac_f32_32x32x32_bf16 {vr(O,16)}, {vr(VR(t,blk),4)}, {vr(S+8*blk,8)}, v{IDX}"
def zero16(O): return f"v_mfma_f32_32x32x8_bf16 {vr(O,16)}, {vr(ZZ,2)}, {vr(ZZ,2)}, 0"
def cset(p): return f"v_mfma_f32_32x32x8_bf16 {vr(CC,16)}, {vr(AC,2)}, {vr(NM[p],2)}, 0"

AD = lambda k: 20 + (k & 7)
def att_step(a, n):
    p = n & 1
    O, Op = (O0, O1) if p == 0 else (O1, O0)
    TB_ = opt("tbar", 5)
    PR = opt("prio", 1)
    for t in range(8):
        Sa, Sb = (S0, S1) if t % 2 == 0 else (S1, S0)
        extra = {}
        def ex(i, s): extra.setdefault(i, []).append(s)
        if t > 0: ex(1, pv(O, t-1, 1, Sb))
        elif n > 0: ex(1, pv(Op, 7, 1, Sb))
        if n == 0: ex(4, f"s_waitcnt vmcnt({max(0, 20-3*t)})")
        if t < 7: ex(4, qk(Sb, t+1, Qr[p]))
        elif n < 7: ex(4, qk(Sb, 0, Qr[1-p]))
        ex(10, pv(O, t, 0, Sa))
        if t == 1 and n > 0:
            ex(0, f"ds_write_b128 v{AD(2*n)}, {vr(Op,4)} offset:{L_XA}")
            ex(2, f"ds_write_b128 v{AD(2*n)}, {vr(Op+4,4)} offset:{L_XB}")
            ex(3, f"ds_write_b32 v{AD(2*n)}, v{Op+8} offset:{L_XL}")
        if t == TB_:
            if n == 5: ex(7, "s_waitcnt vmcnt(1) lgkmcnt(0)")
            else: ex(7, "s_waitcnt lgkmcnt(0)")
            ex(7, "s_barrier")
            if PR: ex(7, "s_setprio 3")
            if n < 7:
                ex(7, f"ds_read_b32 v{NM[1-p]}, v{AD(n+1)} offset:{L_M}")
                ex(8, f"ds_read_b128 {vr(Qr[1-p],4)}, v{AD(n+1)} offset:{L_Q}")
            if n > 0:
                k = 2*n+2 if n < 7 else 2*n+1
                ex(9, f"ds_read_b128 {vr(Op,4)}, v{AD(k)} offset:{L_XA}")
                ex(11, f"ds_read_b128 {vr(Op+4,4)}, v{AD(k)} offset:{L_XB}")
                ex(12, f"ds_read_b32 v{Op+8}, v{AD(k)} offset:{L_XL}")
        if PR:
            pp = [int(x) for x in OPT.get("pp", "64,107,121").split(",")]
            for lvl, q in zip((2, 1, 0), pp):
                z = (TB_*16 + 7 + q) % 128
                if t == z // 16 and (n > 0 or t > TB_): ex(z % 16, f"s_setprio {lvl}")
            if n == 7 and t == 6: ex(12, "s_setprio 2")
            if n == 7 and t == 7: ex(6, "s_setprio 1")
        if t == 6 and n < 7:
            ex(6, "s_waitcnt lgkmcnt(0)")
            ex(7, cset(1-p))
        if n == 1 and t == 0:
            ex(6, f"""s_cmp_lt_u32 s{sWAVE}, 4
                      s_cbranch_scc1 L_nost
                      buffer_store_dwordx4 v[128:131], v14, s[{sWS}:{sWS+3}], s50 offen {sc}
                      buffer_store_dwordx4 v[132:135], v14, s[{sWS}:{sWS+3}], s51 offen {sc}
                      L_nost:""")
            for r in range(4): ex(8+r, f"v_mov_b32 v{136+r}, -1")
            ex(13, f"buffer_store_dwordx4 v[136:139], v14, s[{sWS}:{sWS+3}], s71 offen {sc}")
        if n == 2 and t == 0:
            ex(5, f"v_mov_b32 v2, s{sTAG}")
            ex(6, f"""s_cmp_lt_u32 s{sWAVE}, 4
                      s_waitcnt vmcnt(4)
                      s_mov_b64 exec, 1
                      buffer_store_dword v2, v{ZZ}, s[{sWS}:{sWS+3}], s3 offen {sc}
                      s_cbranch_scc1 L_nofl
                      buffer_store_dword v2, v{ZZ}, s[{sWS}:{sWS+3}], s23 offen {sc}
                      L_nofl:
                      s_mov_b64 exec, -1""")
        if 1 <= n <= 4 and t % 2 == 1:
            j = (n-1)*4 + t//2
            ex(12, f"s_xor_b32 s52, s85, {(j % 8)*65536}")
            ex(13, f"buffer_load_dwordx4 v13, s[{sW}:{sW+3}], s52 offen lds")
            ex(14, "s_add_u32 m0, m0, 8192")
            if j == 7: ex(15, f"s_mov_b64 s[{sW}:{sW+1}], s[8:9]")
        if n == 5 and t == 3:
            ex(13, f"buffer_load_dword v19, v18, s[{sWS}:{sWS+3}], 0 offen {sc}")
        if n == 6 and t == 2:
            ex(12, "s_waitcnt vmcnt(0)")
            ex(13, f"""v_cmp_ne_u32 vcc, s{sTAG}, v19
                       s_nop 1
                       s_cbranch_vccnz L_ob_late
                       L_ob_ok:""")
        if (n == 6 and t >= 3) or (n == 7 and t < 3):
            j = t - 3 if n == 6 else t + 5
            ex(13, op_oload(0, j))
        if n == 7:
            if t == 0: ex(2, "\n".join(op_waddr(0)))
            slots = [5, 6, 8, 9, 11, 12, 14, 15]
            for i, l in zip(slots, WPRE[t]): ex(i, l)
        for i in range(16):
            a(f"v_exp_f32 v{Sa+i}, v{Sa+i}")
            for s in extra.get(i, []): a(s)

FK, FV = 84, 88
def att_fallback(a):
    a(f"""s_lshl_b32 s51, s{sH}, 16
          s_add_u32 s52, s51, {KF}
          s_add_u32 s54, s51, {VF}
          s_add_u32 s55, s52, 65536
          ds_read_b128 {vr(Qr[0],4)}, v{AD(7)} offset:{L_Q}
          v_mov_b32 v3, 0xff800000
          s_mov_b32 s53, s52""")
    v_const_init(a, range(FV, FV+8))
    a.label("L_fb1")
    a(f"""buffer_load_dwordx4 {vr(FK,4)}, v14, s[{sWS}:{sWS+3}], s53 offen sc1
          s_add_u32 s53, s53, 1024
          s_waitcnt vmcnt(0) lgkmcnt(0)
          v_mfma_f32_32x32x16_bf16 {vr(S0,16)}, {vr(FK,4)}, {vr(Qr[0],4)}, 0""")
    max16(a, S0, 4, 5)
    a(f"""v_max_f32 v3, v3, v4
          s_cmp_lt_u32 s53, s55
          s_cbranch_scc1 L_fb1
          v_mov_b32 v4, v3
          v_permlane32_swap_b32 v3, v4
          v_max_f32 v3, v3, v4""")
    for r in range(16): a(f"v_sub_f32 v{CC+r}, 0, v3\nv_mov_b32 v{O0+r}, 0")
    a.label("L_fb2")
    a(f"""buffer_load_dwordx4 {vr(FK,4)}, v14, s[{sWS}:{sWS+3}], s52 offen sc1
          s_mov_b64 exec, s[78:79]
          buffer_load_dwordx4 {vr(FV,4)}, v15, s[{sWS}:{sWS+3}], s54 offen sc1
          buffer_load_dwordx4 {vr(FV+4,4)}, v15, s[{sWS}:{sWS+3}], s54 offen offset:256 sc1
          s_mov_b64 exec, -1
          s_add_u32 s52, s52, 1024
          s_add_u32 s54, s54, 1024
          s_waitcnt vmcnt(0)""")
    a(f"v_mfma_f32_32x32x16_bf16 {vr(S0,16)}, {vr(FK,4)}, {vr(Qr[0],4)}, {vr(CC,16)}")
    for i in range(16): a(f"v_exp_f32 v{S0+i}, v{S0+i}")
    for blk in range(2): a(f"v_smfmac_f32_32x32x32_bf16 {vr(O0,16)}, {vr(FV+4*blk,4)}, {vr(S0+8*blk,8)}, v{IDX}")
    a(f"""s_cmp_lt_u32 s52, s55
          s_nop 7
          s_nop 7
          s_cbranch_scc1 L_fb2
          s_branch L_att_ok""")

def phase_att(a):
    srd(a, sW, 14, 512*1024)
    a(f"""s_mov_b32 m0, s67
          v_mov_b32 v13, v152
          v_mov_b32 v8, v153
          v_mov_b32 v9, v154
          v_mov_b32 v10, v155
          v_mov_b32 v18, v156
          v_mov_b32 v{AC}, v157
          v_mov_b32 v{AD(0)}, v158
          v_mov_b32 v{IDX}, 0xdddd
          v_mov_b32 v{ZZ}, 0
          v_mov_b32 v{ZZ+1}, 0
          v_mov_b32 v{NM[0]+1}, 0
          v_mov_b32 v{NM[1]+1}, 0
          v_mov_b32 v{AC+1}, 0""")
    a(zero16(O0)); a(zero16(O1))
    a("""s_mov_b32 s52, 0
         s_waitcnt vmcnt(23)""")
    stamp(a, 8)
    a(f"""v_mfma_f32_32x32x16_bf16 {vr(S0,16)}, {vr(KR(0),4)}, {vr(Qr[0],4)}, 0
          ds_write_b128 v{AD(0)}, {vr(Qr[0],4)} offset:{L_Q}""")
    for k in range(1, 4): a(f"v_add_u32 v{AD(k)}, {k*1024}, v{AD(0)}\nv_and_b32 v{AD(k)}, 0x1fff, v{AD(k)}")
    for k in range(4): a(f"v_xor_b32 v{AD(k+4)}, 0x1000, v{AD(k)}")
    max16(a, S0, 3, 4)
    a(f"""v_mov_b32 v4, v3
          v_permlane32_swap_b32 v3, v4
          v_max_f32 v3, v3, v4
          v_cvt_pk_bf16_f32 v{NM[0]}, -v3, 0
          ds_write_b32 v{AD(0)}, v{NM[0]} offset:{L_M}""")
    a(cset(0))
    a(qk(S0, 0, Qr[0]))
    stamp(a, 9)
    if LIGHT: a("s_memrealtime s[4:5]")
    diag_hold(a, "att0")
    for n in range(8):
        att_step(a, n)
        if n < 7: stamp(a, 24+n)
    a(pv(O1, 7, 1, S1))
    stamp(a, 10)
    if LIGHT: a("s_memrealtime s[6:7]")
    diag_hold(a, "att1")
    a(f"""s_mov_b32 s60, {f2u(2.0**-60):#x}
          s_mov_b32 s61, {f2u(2.0**100):#x}
          s_waitcnt lgkmcnt(0)""")
    for r in (8, 0, 1, 2, 3, 4, 5, 6, 7): a(f"v_add_f32 v{O0+r}, v{O0+r}, v{O1+r}")
    a(f"""v_add_f32 v3, abs(v{O0}), abs(v{O0+1})
          v_add_f32 v4, abs(v{O0+2}), abs(v{O0+3})
          v_add_f32 v5, abs(v{O0+4}), abs(v{O0+5})
          v_add_f32 v6, abs(v{O0+6}), abs(v{O0+7})
          v_add_f32 v3, v3, v4
          v_add_f32 v5, v5, v6
          v_cmp_lt_f32 s[52:53], s60, v{O0+8}
          v_add_f32 v3, v3, v{O0+8}
          v_add_f32 v3, v3, v5
          v_cmp_gt_f32 vcc, s61, v3
          s_and_b64 vcc, vcc, s[52:53]
          s_cmp_eq_u64 vcc, -1
          s_cbranch_scc0 L_fallback""")
    a.label("L_att_ok")
    a(f"v_rcp_f32 v3, v{O0+8}")
    for r in range(8): a(f"v_mul_f32 v{O0+r}, v3, v{O0+r}")
    cvt2(a, 112, O0); cvt2(a, 114, O0+4)
    for r in range(112, 116): a(f"v_min_u32 v{r}, -2, v{r}")
    a(f"""v_permlane32_swap_b32 v112, v114
          v_permlane32_swap_b32 v113, v115
          buffer_store_dwordx4 v[112:115], v14, s[{sWS}:{sWS+3}], s71 offen {sc}
          s_setprio 0""")
    stamp(a, 11)

sOS = 86
def early_setup(a):
    att_load_setup(a)
    srd(a, sOUT, 16, 2048*2048)
    a(f"""v_lshrrev_b32 v1, 3, v0
          v_and_b32 v2, 7, v0
          v_bfe_u32 v3, v1, 1, 1
          s_and_b32 s52, s{sWAVE}, 1
          s_lshl_b32 s52, s52, 1
          v_add_u32 v3, s52, v3
          v_lshlrev_b32 v3, 1, v3
          v_xor_b32 v3, v3, v2
          v_lshlrev_b32 v3, 4, v3
          v_lshl_add_u32 v3, v1, 10, v3
          s_and_b32 s55, s{sCO}, 1
          s_lshl_b32 s53, s55, 2
          s_xor_b32 s52, s{sWAVE}, s53
          s_lshl_b32 s52, s52, 13
          s_lshl_b32 s53, s{sCO}, 7
          s_add_u32 s52, s52, s53
          v_add_u32 v152, s52, v3
          s_lshl_b32 s52, s{sWAVE}, 10
          s_add_u32 s67, s52, {L_WO}
          v_add_u32 v158, s52, v14
          s_lshr_b32 s85, s{sCO}, 1
          s_lshl_b32 s53, s55, 2
          s_add_u32 s85, s85, s53
          s_lshl_b32 s85, s85, 16""")
    a(f"""v_lshrrev_b32 v2, 4, v0
          v_bfe_u32 v4, v0, 2, 2
          v_lshrrev_b32 v5, 1, v4
          v_and_b32 v6, 1, v2
          v_lshl_add_u32 v5, v6, 1, v5
          v_lshlrev_b32 v5, 5, v5
          v_lshl_add_u32 v5, v4, 7, v5
          v_and_b32 v6, 3, v0
          v_lshl_add_u32 v5, v6, 3, v5
          v_lshl_add_u32 v5, v2, 10, v5
          s_lshr_b32 s54, s{sWAVE}, 2
          s_lshl_b32 s52, s54, 15
          s_add_u32 s52, s52, {L_WO}
          v_add_u32 v153, s52, v5
          s_xor_b32 s55, s55, s54
          v_and_b32 v1, 15, v0
          v_lshlrev_b32 v5, 4, v1
          v_lshl_add_u32 v5, v2, 9, v5
          s_lshl_b32 s52, s{sTO}, 1
          s_lshr_b32 s53, s{sW4}, 1
          s_add_u32 s52, s52, s53
          s_lshl_b32 s52, s52, 15
          s_and_b32 s53, s{sW4}, 1
          s_lshl_b32 s53, s53, 8
          s_add_u32 s52, s52, s53
          s_lshl_b32 s53, s55, 14
          s_add_u32 s52, s52, s53
          s_add_u32 s52, s52, {OB}
          v_add_u32 v154, s52, v5
          v_and_b32 v5, 1, v2
          v_lshlrev_b32 v5, 5, v5
          v_lshrrev_b32 v6, 1, v2
          v_lshl_add_u32 v5, v6, 4, v5
          v_lshl_add_u32 v5, v1, 11, v5
          s_lshl_b32 s52, s{sTO}, 17
          s_lshl_b32 s53, s{sW4}, 15
          s_add_u32 s52, s52, s53
          s_lshl_b32 s53, s{sCO}, 7
          s_add_u32 s52, s52, s53
          s_lshl_b32 s53, s54, 6
          s_add_u32 s52, s52, s53
          v_add_u32 v155, s52, v5
          s_lshl_b32 s52, s{sTO}, 7
          s_lshl_b32 s53, s55, 6
          s_add_u32 s52, s52, s53
          s_add_u32 s52, s52, {F_OB}
          v_lshl_add_u32 v156, v1, 2, s52
          s_lshr_b32 s53, s{sW4}, 1
          s_add_u32 s53, s53, s{sTO}
          s_lshl_b32 s53, s53, 7
          s_add_u32 s53, s53, {F_OA - F_OB}
          v_and_b32 v5, 1, v2
          v_mul_u32_u24 v5, s53, v5
          v_add_u32 v156, v156, v5
          v_cmp_gt_u32 vcc, 32, v0
          v_mov_b32 v2, 0x3f80
          s_lshl_b32 s{sOS}, s{sCO}, 11
          v_cndmask_b32 v157, 0, v2, vcc""")
    for k in range(1, 8): a(f"s_xor_b32 s{sOS+k}, s{sOS}, {k*2048}")
    a(f"""s_add_u32 s52, s{sWAVE}, 7
          s_and_b32 s52, s52, 7
          s_lshl_b32 s71, s{sB}, 3
          s_add_u32 s71, s71, s52
          s_lshl_b32 s3, s71, 7
          s_lshl2_add_u32 s3, s{sH}, s3
          s_add_u32 s3, s3, {F_OA}
          s_lshl_b32 s71, s71, 15
          s_lshl_b32 s52, s{sH}, 10
          s_add_u32 s71, s71, s52
          s_add_u32 s71, s71, {OA}""")

_wf = [KR(0), KR(1)]
for _t in range(1, 7): _wf += [KR(_t+1), VR(_t-1, 0), VR(_t-1, 1)]
_wf += [VR(6, 0), VR(6, 1), VR(7, 0), VR(7, 1)] + [S0 + 4*i for i in range(8)]
def WF(s, ct): return _wf[4*s + ct]
OF = lambda br, s: (64 if br else 128) + 4*s
PA = lambda br, ct: (112 if br else 96) + 4*ct
WA = (28, 29, 30, 17)
def op_waddr(br):
    return [f"v_add_u32 v{WA[0]}, {br*65536}, v8" if br else f"v_mov_b32 v{WA[0]}, v8"] + [f"v_xor_b32 v{WA[ct]}, {ct*32}, v{WA[0]}" for ct in range(1, 4)]
def op_wreads(s):
    return [f"ds_read_b64_tr_b16 {vr(WF(s,ct)+2*jj,2)}, v{WA[ct]} offset:{s*4096 + jj*512}" for ct in range(4) for jj in range(2)]
_all = [l for _s in range(8) for l in op_wreads(_s)]
WPRE = [_all[0:4]] + [_all[4+6*k:10+6*k] for k in range(6)] + [_all[40:44]]
WREST = _all[44:]
def op_oload(br, s):
    return f"buffer_load_dwordx4 {vr(OF(br,s),4)}, v9, s[{sWS}:{sWS+3}], s{sOS+s} offen {sc}"
def op_mfmas(br, s, first):
    return [f"v_mfma_f32_16x16x32_bf16 {vr(PA(br,ct),4)}, {vr(WF(s,ct),4)}, {vr(OF(br,s),4)}, {0 if first else vr(PA(br,ct),4)}" for ct in range(4)]

def op_send(a, br):
    o0, o1 = (L_XA, L_XB) if br == 0 else (L_WO, L_WO + 8192)
    lab = a.newlabel("L_op")
    a(f"""s_cmp_ge_u32 s{sWAVE}, 4
          s_cbranch_scc1 {lab}_hi
          ds_write_b128 v{AD(7)}, {vr(PA(br,2),4)} offset:{o0}
          ds_write_b128 v{AD(7)}, {vr(PA(br,3),4)} offset:{o1}
          s_branch {lab}_j""")
    a.label(f"{lab}_hi")
    a(f"""ds_write_b128 v{AD(7)}, {vr(PA(br,0),4)} offset:{o0}
          ds_write_b128 v{AD(7)}, {vr(PA(br,1),4)} offset:{o1}""")
    for r in range(8): a(f"v_mov_b32 v{PA(br,0)+r}, v{PA(br,2)+r}")
    a.label(f"{lab}_j")
def op_read(a, br):
    o0, o1 = (L_XA, L_XB) if br == 0 else (L_WO, L_WO + 8192)
    a(f"""ds_read_b128 {vr(PA(br,2),4)}, v{AD(3)} offset:{o0}
          ds_read_b128 {vr(PA(br,3),4)}, v{AD(3)} offset:{o1}""")
def op_sum(a, br):
    d = PA(br, 2)
    for r in range(8): a(f"v_add_f32 v{PA(br,0)+r}, v{PA(br,0)+r}, v{PA(br,2)+r}")
    cvt2(a, d, PA(br,0)); cvt2(a, d+2, PA(br,1))
    a(f"""v_permlane16_swap_b32 v{d}, v{d+2}
          v_permlane16_swap_b32 v{d+1}, v{d+3}""")
def op_store(a, br):
    a(f"buffer_store_dwordx4 {vr(PA(br,2),4)}, v10, s[{sOUT}:{sOUT+3}], 0 offen offset:{0 if br else 1024} " + OPT.get("ost" + "BA"[br], "").replace("+", " "))

def oa_check(a, s, bad):
    o = OF(1, s)
    a(f"""v_max3_u32 v3, v{o}, v{o+1}, v{o+2}
          v_max_u32 v3, v3, v{o+3}
          v_cmp_eq_u32 vcc, -1, v3
          s_nop 1
          s_cbranch_vccnz {bad}""")

def phase_out(a):
    a(f"v_subrev_u32 v9, {OB-OA}, v9\ns_waitcnt vmcnt(1)")
    order = []
    pend = [("B", l) for l in WREST]
    switched = [False]
    def drain(n):
        while pend and n:
            br, l = pend.pop(0)
            if br == "A" and not switched[0]:
                for x in op_waddr(1): a(x)
                switched[0] = True
            a(l); order.append((br, l)); n -= 1
    def need(br, s):
        k = max(order.index((br, l)) for l in op_wreads(s) if (br, l) in order)
        return min(15, len(order) - 1 - k)
    for s in range(8):
        if s >= 5: a(f"s_waitcnt lgkmcnt({need('B', s)})")
        for ct, m in enumerate(op_mfmas(0, s, s == 0)):
            a(m)
            pend += [("A", l) for l in op_wreads(s)[2*ct:2*ct+2]]
            drain(opt("trd", 2))
        if s == opt("opos", 7):
            for k in range(8): a(op_oload(1, k))
    stamp(a, 12)
    for r in range(16):
        a(f"v_mov_b32 v{PA(1,0)+r}, 0"); drain(2)
    drain(99)
    op_send(a, 0)
    a("s_mov_b32 s52, 0\ns_mov_b32 s70, 0\ns_waitcnt lgkmcnt(0)")
    if opt("tb1", 1):
        a("s_barrier"); op_read(a, 0)
    stamp(a, 14)
    for s in range(8):
        a(f"s_waitcnt vmcnt({7-s})")
        oa_check(a, s, f"L_oa_bad{s}")
        for m in op_mfmas(1, s, False): a(m)
        a.label(f"L_oa_nx{s}")
    stamp(a, 15)
    a("s_cmp_lg_u32 s52, 0\ns_cbranch_scc1 L_oa_retry")
    a.label("L_oa_done")
    stamp(a, 17)
    if opt("tb1", 1):
        a("s_waitcnt lgkmcnt(0)")
        op_sum(a, 0)
        op_send(a, 1)
        op_store(a, 0)
        a("s_waitcnt lgkmcnt(0)\ns_barrier")
        op_read(a, 1)
        a("s_waitcnt lgkmcnt(0)")
        op_sum(a, 1)
        op_store(a, 1)
    a(f"""s_or_b32 s50, s2, s{sWAVE}
          s_cbranch_scc1 L_noepoch
          s_mov_b32 s50, {F_E}""")
    flag_store(a, 50)
    a.label("L_noepoch")
    diag_hold(a, "end")
    stamp(a, 18); rstamp(a, 63)
    if STAMP: a("v_writelane_b32 v7, s70, 19")
    stamp_flush(a)

def oa_retry(a):
    for s in range(8):
        a.label(f"L_oa_bad{s}")
        a(f"s_or_b32 s52, s52, {1<<s}\ns_branch L_oa_nx{s}")
    a.label("L_oa_retry")
    for s in range(8):
        a(f"s_bitcmp1_b32 s52, {s}\ns_cbranch_scc0 L_oa_i{s}")
        a(op_oload(1, s))
        a.label(f"L_oa_i{s}")
    a(f"""s_add_u32 s70, s70, 1
          s_cmp_gt_u32 s70, {SPIN}
          s_waitcnt vmcnt(0)
          s_cbranch_scc1 L_oa_done""")
    for s in range(8):
        a(f"s_bitcmp1_b32 s52, {s}\ns_cbranch_scc0 L_oa_c{s}")
        oa_check(a, s, f"L_oa_c{s}")
        for m in op_mfmas(1, s, False): a(m)
        a(f"s_and_b32 s52, s52, {0xff ^ (1<<s)}")
        a.label(f"L_oa_c{s}")
    a("""s_cmp_lg_u32 s52, 0
         s_cbranch_scc1 L_oa_retry
         s_branch L_oa_done""")

HEAD = open("cdna_kernels/" + NAME + ".s.ref").read().split("; Override launch")[0]
def build(path):
    a = Asm()
    entry(a)
    a(f"""s_cmp_ge_u32 s{sWAVE}, 4
          s_cbranch_scc1 L_consumer""")
    loader(a)
    a("s_branch L_qkv_done")
    a.label("L_consumer")
    consumer(a)
    a.label("L_qkv_done")
    phase_att(a)
    phase_out(a)
    a.label("L_end")
    a("s_endpgm")
    oa_retry(a)
    a.label("L_c_late")
    kv_vpoll(a, "c")
    a("s_branch L_c_ok")
    a.label("L_ob_late")
    vpoll(a, "L_ob_poll", 19, 18, None)
    a("s_branch L_ob_ok")
    a.label("L_fallback")
    att_fallback(a)
    a.label("L_code_end")
    a("s_endpgm")
    n = NAME + "_kernel"
    out = [HEAD.rstrip(), f"; @launch grid=(256,1,1) block=(512,1,1) lds={LDS_BYTES}",
           '.amdgcn_target "amdgcn-amd-amdhsa--gfx950"\n.text', f".globl {n}\n.p2align 12\n.p2align 8\n.type {n},@function\n{n}:"]
    for l in fix_hazards(a.lines, verbose="-v" in sys.argv):
        out.append(l if l.endswith(":") else "    " + l)
    out.append(f""".section .rodata,"a"
.p2align 6
.amdhsa_kernel {n}
  .amdhsa_next_free_vgpr 256
  .amdhsa_next_free_sgpr 100
  .amdhsa_accum_offset 256
  .amdhsa_group_segment_fixed_size 0
  .amdhsa_kernarg_size 72
  .amdhsa_user_sgpr_count 2
  .amdhsa_user_sgpr_kernarg_segment_ptr 1
  .amdhsa_system_sgpr_workgroup_id_x 1
.end_amdhsa_kernel
""")
    open(path, "w").write("\n".join(out))

if __name__ == "__main__":
    build(OPT.get("out", "stamp.s" if STAMP else "fused.s"))
```
